```python
import torch

def _softmax(x, axis=-1):
    return torch.softmax(x, dim=axis)
def _gelu(x):
    return torch.nn.functional.gelu(x, approximate="tanh")
def _silu(x):
    return torch.nn.functional.silu(x)
def _sigmoid(x):
    return torch.sigmoid(x)
def _layernorm(x, axis=-1, eps=1e-5):
    m = x.mean(dim=axis, keepdim=True)
    v = x.var(dim=axis, keepdim=True, unbiased=False)
    return (x - m) / torch.sqrt(v + eps)
def _scatter_add(tgt, idx, src, axis=0):
    return tgt.clone().index_add_(axis, idx, src)
def _segment_sum(src, seg, n):
    out = torch.zeros((n,) + src.shape[1:], dtype=src.dtype)
    return out.index_add_(0, seg, src)
def _pad(x, pw):
    flat = tuple(v for pair in reversed(pw) for v in pair)
    return torch.nn.functional.pad(x, flat)

kernel_name = 'concat_heads__compressed_kv_cla__sliding_block_cached__decode'

def setup_inputs():

    _w = (lambda a: (lambda t: t.to(torch.bfloat16) if t.is_floating_point() else t)(torch.as_tensor(a)))
    def _A_setup():
        B, H, Sq, Sk, D, M = 4, 32, 1, 4096, 128, 512
        Dc = 4 * D
        return {
            "x": _w((lambda *s: torch.randn(*s, dtype=torch.bfloat16) * 3.2)(B, Sq, M)),
            "c_kv": _w((lambda *s: torch.randn(*s, dtype=torch.bfloat16) * 0.1)(B, Sk, Dc)),
            "w_q": _w((lambda *s: torch.randn(*s, dtype=torch.bfloat16) * 6.4)(M, H, D) * (M ** -0.5)),
            "w_uk": _w((lambda *s: torch.randn(*s, dtype=torch.bfloat16) * 6.4)(Dc, H, D) * (Dc ** -0.5)),
            "w_uv": _w((lambda *s: torch.randn(*s, dtype=torch.bfloat16) * 0.1)(Dc, H, D) * (Dc ** -0.5)),
            "w_o": _w((lambda *s: torch.randn(*s, dtype=torch.bfloat16) * 0.1)(H, D, M) * ((H * D) ** -0.5)),
        }
    _A_in = _A_setup()

    def _B_setup():
        B, Sq, D = 4, 1, 512
        Hq, Hkv, Sk, Dh = 32, 8, 4096, 128
        assert Hq % Hkv == 0, (Hq, Hkv)
        return {
            "x": _w((lambda *s: torch.randn(*s, dtype=torch.bfloat16) * 1.6)(B, Sq, D)),
            "k_cache": _w((lambda *s: torch.randn(*s, dtype=torch.bfloat16) * 1.6)(B, Hkv, Sk, Dh)),
            "v_cache": _w((lambda *s: torch.randn(*s, dtype=torch.bfloat16) * 0.05)(B, Hkv, Sk, Dh)),
            "wq": _w((lambda *s: torch.randn(*s, dtype=torch.bfloat16) * 1.6)(D, Hq * Dh) * (D ** -0.5)),
            "wo": _w((lambda *s: torch.randn(*s, dtype=torch.bfloat16) * 0.05)(Hq * Dh, D) * ((Hq * Dh) ** -0.5)),
        }
    _B_in = _B_setup()

    return {
        "A_x": _A_in["x"],
        "A_c_kv": _A_in["c_kv"],
        "A_w_q": _A_in["w_q"],
        "A_w_uk": _A_in["w_uk"],
        "A_w_uv": _A_in["w_uv"],
        "A_w_o": _A_in["w_o"],
        "B_x": _B_in["x"],
        "B_k_cache": _B_in["k_cache"],
        "B_v_cache": _B_in["v_cache"],
        "B_wq": _B_in["wq"],
        "B_wo": _B_in["wo"],
    }

def reference(A_x, A_c_kv, A_w_q, A_w_uk, A_w_uv, A_w_o, B_x, B_k_cache, B_v_cache, B_wq, B_wo):
    def _A_ref(x, c_kv, w_q, w_uk, w_uv, w_o):
        B, Sq, M = x.shape[0], x.shape[1], x.shape[2]
        Sk = c_kv.shape[1]
        H, D = w_q.shape[1], w_q.shape[2]
        q = torch.einsum("bqm,mhd->bhqd", x, w_q)
        k = torch.einsum("bkc,chd->bhkd", c_kv, w_uk)
        v = torch.einsum("bkc,chd->bhkd", c_kv, w_uv)
        scores = torch.einsum("bhqd,bhkd->bhqk", q, k) * (D ** -0.5)
        off = Sk - Sq
        qi = torch.arange(Sq)[:, None]
        kj = torch.arange(Sk)[None, :]
        cmask = kj <= (qi + off)
        scores = torch.where(cmask[None, None], scores, -1e9)
        p = _softmax(scores, axis=-1)
        ctx = torch.einsum("bhqk,bhkd->bhqd", p, v)
        return torch.einsum("bhqd,hdm->bqm", ctx, w_o)

    def _B_ref(x, k_cache, v_cache, wq, wo):
        B, Sq, D = x.shape
        Hq, Dh = 32, 128
        Hkv, Sk = k_cache.shape[1], k_cache.shape[2]
        W = min(4096, max(256, Sk // 4))
        rep = Hq // Hkv
        q = (lambda x, *d: x.permute(*d))((x @ wq).reshape(B, Sq, Hq, Dh), 0, 2, 1, 3)
        k = (lambda x, n, axis: torch.repeat_interleave(x, n, dim=axis))(k_cache[:, :, Sk - W:, :], rep, axis=1)
        v = (lambda x, n, axis: torch.repeat_interleave(x, n, dim=axis))(v_cache[:, :, Sk - W:, :], rep, axis=1)
        scores = torch.einsum("bhqd,bhkd->bhqk", q, k) * (Dh ** -0.5)
        p = _softmax(scores, axis=-1)
        o = torch.einsum("bhqk,bhkd->bhqd", p, v)
        return (lambda x, *d: x.permute(*d))(o, 0, 2, 1, 3).reshape(B, Sq, Hq * Dh) @ wo

    a = _A_ref(A_x, A_c_kv, A_w_q, A_w_uk, A_w_uv, A_w_o)
    b = _B_ref(B_x, B_k_cache, B_v_cache, B_wq, B_wo)
    return torch.concatenate([a, b], axis=-1)
```

```python
import re

REG_RE = re.compile(r'\b([vas])\[(\d+):(\d+)\]|\b([vas])(\d+)\b|\b(vcc|exec|m0|scc)\b')

def regs_of(tok):
    out = set()
    for m in REG_RE.finditer(tok):
        if m.group(1):
            for i in range(int(m.group(2)), int(m.group(3)) + 1):
                out.add((m.group(1), i))
        elif m.group(4):
            out.add((m.group(4), int(m.group(5))))
        else:
            out.add(('x', m.group(6)))
    return out

def split_ops(rest):
    ops = []; depth = 0; cur = ''
    for ch in rest:
        if ch == '[': depth += 1
        if ch == ']': depth -= 1
        if ch == ',' and depth == 0:
            ops.append(cur.strip()); cur = ''
        else:
            cur += ch
    if cur.strip(): ops.append(cur.strip())
    return ops

TRANS = ('v_exp_f32', 'v_log_f32', 'v_rcp_f32', 'v_rsq_f32', 'v_sqrt_f32', 'v_sin_f32', 'v_cos_f32', 'v_rcp_iflag_f32')

class Ins:
    __slots__ = ('text', 'mn', 'kind', 'wr', 'rd', 'states', 'passes', 'srcC', 'srcAB', 'dpp', 'store_data', 'is_trans', 'lanesel')
    def __init__(self, text):
        self.text = text
        t = text.split(';')[0].strip()
        parts = t.split(None, 1)
        mn = parts[0]; rest = parts[1] if len(parts) > 1 else ''
        self.mn = mn
        ops = split_ops(rest)
        self.wr = set(); self.rd = set(); self.states = 1; self.passes = 0
        self.srcC = set(); self.srcAB = set(); self.dpp = ('dpp' in mn) or ('row_' in rest) or ('quad_perm' in rest)
        self.store_data = set(); self.is_trans = False; self.lanesel = set()
        if mn.startswith('v_mfma'):
            self.kind = 'mfma'
            self.wr = regs_of(ops[0]); self.srcAB = regs_of(ops[1]) | regs_of(ops[2]); self.srcC = regs_of(ops[3])
            self.rd = self.srcAB | self.srcC
            self.passes = 8 if '32x32' in mn else 4
            if '4x4x4' in mn: self.passes = 2
        elif mn.startswith('v_'):
            self.kind = 'valu'
            base = re.sub(r'_(e32|e64|dpp|sdwa)$', '', mn)
            self.is_trans = base in TRANS
            if base.startswith('v_cmp'):
                self.wr = regs_of(ops[0]);
                for o in ops[1:]: self.rd |= regs_of(o)
                if base.startswith('v_cmpx'): self.wr.add(('x', 'exec'))
            elif base.startswith('v_permlane') and 'swap' in base:
                self.wr = regs_of(ops[0]) | regs_of(ops[1]); self.rd = set(self.wr)
            elif base in ('v_add_co_u32', 'v_sub_co_u32', 'v_subrev_co_u32', 'v_addc_co_u32', 'v_subb_co_u32', 'v_mad_u64_u32', 'v_div_scale_f32'):
                self.wr = regs_of(ops[0]) | regs_of(ops[1])
                for o in ops[2:]: self.rd |= regs_of(o)
            else:
                self.wr = regs_of(ops[0])
                for o in ops[1:]: self.rd |= regs_of(o)
                if base in ('v_fmac_f32', 'v_dot2c_f32_bf16', 'v_writelane_b32', 'v_pk_fmac_f16') or self.dpp:
                    self.rd |= self.wr
                if base == 'v_cndmask_b32' and len(ops) == 3: self.rd.add(('x', 'vcc'))
                if base in ('v_readlane_b32', 'v_writelane_b32'):
                    self.lanesel = regs_of(ops[2])
        elif mn.startswith('buffer_') or mn.startswith('global_') or mn.startswith('flat_'):
            self.kind = 'vmem'
            allr = set()
            for o in ops: allr |= regs_of(o)
            is_lds = (' lds' in (' ' + rest)) or ('load_lds' in mn)
            if 'load' in mn and not is_lds:
                self.wr = regs_of(ops[0])
                for o in ops[1:]: self.rd |= regs_of(o)
            elif 'atomic' in mn:
                if ' sc0' in (' ' + rest): self.wr = regs_of(ops[0])
                self.rd = allr
            elif 'store' in mn:
                self.rd = allr
                if mn.startswith('buffer_'): d = regs_of(ops[0])
                else: d = regs_of(ops[1])
                if 'x4' in mn or 'x3' in mn: self.store_data = d
            else:
                self.rd = allr
            if is_lds: self.rd.add(('x', 'm0'))
        elif mn.startswith('ds_'):
            self.kind = 'ds'
            if 'read' in mn or 'permute' in mn or 'swizzle' in mn:
                self.wr = regs_of(ops[0])
                for o in ops[1:]: self.rd |= regs_of(o)
            else:
                for o in ops: self.rd |= regs_of(o)
        elif mn == 's_nop':
            self.kind = 'nop'; self.states = int(rest, 0) + 1
        elif mn.startswith('s_'):
            self.kind = 'salu'
            if mn.startswith('s_load') or mn in ('s_memtime', 's_memrealtime') or mn.startswith('s_buffer_load'):
                self.kind = 'smem'
            nodst = mn.startswith('s_cmp') or mn.startswith('s_cbranch') or mn in ('s_branch', 's_waitcnt', 's_barrier', 's_endpgm', 's_sleep', 's_setprio', 's_setreg_b32', 's_sethalt', 's_setreg_imm32_b32')
            if ops and not nodst:
                self.wr = regs_of(ops[0])
                for o in ops[1:]: self.rd |= regs_of(o)
                if 'saveexec' in mn: self.wr.add(('x', 'exec'))
            else:
                for o in ops: self.rd |= regs_of(o)
        else:
            raise ValueError('unknown instr ' + text)

def is_vec(r): return r[0] in 'va'
def is_sg(r): return r[0] == 's' or r == ('x', 'vcc')

def required(p, c):
    req = 0
    pw = p.wr
    if p.kind == 'valu':
        vw = {r for r in pw if is_vec(r)}
        sw = {r for r in pw if is_sg(r)}
        if c.kind == 'mfma' and (vw & c.rd): req = max(req, 2)
        if c.kind == 'valu':
            if c.dpp and (vw & c.rd): req = max(req, 2)
            if c.mn.startswith('v_permlane') and (vw & c.rd): req = max(req, 2)
            if c.mn.startswith(('v_readlane', 'v_readfirstlane')) and (vw & c.rd): req = max(req, 1)
            if p.is_trans and not c.is_trans and (vw & c.rd): req = max(req, 1)
            if sw & c.rd: req = max(req, 2)
            if sw & c.lanesel: req = max(req, 4)
            if ('x', 'exec') in pw: req = max(req, 5 if c.dpp else 4)
            if c.store_data: pass
        if c.kind == 'mfma' and ('x', 'exec') in pw: req = max(req, 4)
        if c.kind == 'vmem' and (sw & c.rd): req = max(req, 5)
        if p.is_trans and c.kind in ('vmem', 'ds') and (vw & c.rd): req = max(req, 1)
    if p.kind == 'mfma':
        n = p.passes
        raw = {2: 5, 4: 8, 8: 12, 16: 20}[n]
        ovl = {2: 4, 4: 6, 8: 10, 16: 18}[n]
        war = {2: 1, 4: 3, 8: 7, 16: 15}[n]
        if c.kind == 'mfma':
            if pw & c.srcAB: req = max(req, raw)
            if pw & c.srcC:
                if pw == c.srcC and c.passes == n: req = max(req, 2 if n == 2 else 0)
                else: req = max(req, ovl)
            elif pw & c.wr:
                req = max(req, raw)
        elif c.kind in ('valu', 'vmem', 'ds'):
            if pw & (c.rd | c.wr): req = max(req, raw)
            if c.kind == 'valu' and (p.srcC & c.wr): req = max(req, war)
    if p.kind == 'vmem' and p.store_data:
        if c.kind == 'valu' and (p.store_data & c.wr): req = max(req, 2)
        elif (p.store_data & c.wr): req = max(req, 1)
    if p.kind == 'salu' and ('x', 'm0') in pw:
        if c.kind == 'vmem' and ('x', 'm0') in c.rd: req = max(req, 1)
    return req

class Asm:
    def __init__(self):
        self.items = []
        self.vm = 0
        self.lg = 0
        self.uid = 0
        self.nops_added = 0
    def raw(self, t): self.items.append(('raw', t))
    def label(self, n): self.items.append(('label', n))
    def newlabel(self, base='L'):
        self.uid += 1
        return '%s_%d' % (base, self.uid)
    def comment(self, t): self.items.append(('raw', '    ; ' + t))
    def __call__(self, text):
        for line in text.split('\n'):
            line = line.strip()
            if not line or line.startswith(';'): continue
            ins = Ins(line)
            self.items.append(('i', ins))
            if ins.kind == 'vmem' and not ins.mn.startswith(('buffer_wbl2', 'buffer_inv')): self.vm += 1
            if ins.kind == 'ds': self.lg += 1
    def vm_token(self): return self.vm
    def wait_vm(self, tok):
        n = self.vm - tok
        assert n >= 0
        self('s_waitcnt vmcnt(%d)' % min(n, 63))
    def lg_token(self): return self.lg
    def wait_lg(self, tok):
        n = self.lg - tok
        assert n >= 0
        self('s_waitcnt lgkmcnt(%d)' % min(n, 15))
    def fence(self):
        self.items.append(('fence', None))
    def render(self):
        out = []; hist = []
        for kind, x in self.items:
            if kind == 'raw': out.append(x); continue
            if kind == 'label': out.append(x + ':'); continue
            if kind == 'fence':
                need = 0; dist = 0
                for p in reversed(hist):
                    if p.kind == 'mfma': r = {2: 5, 4: 8, 8: 12, 16: 20}[p.passes]
                    elif p.kind == 'valu': r = 5
                    elif p.kind == 'vmem' and p.store_data: r = 2
                    else: r = 1 if ('x', 'm0') in p.wr else 0
                    need = max(need, r - dist)
                    dist += p.states
                    if dist > 24: break
                while need > 0:
                    k = min(need, 8); out.append('    s_nop %d' % (k - 1)); need -= k; self.nops_added += 1
                hist = []
                continue
            ins = x
            need = 0; dist = 0
            for p in reversed(hist):
                r = required(p, ins)
                need = max(need, r - dist)
                dist += p.states
                if dist > 24: break
            while need > 0:
                k = min(need, 16)
                n = Ins('s_nop %d' % (k - 1)); hist.append(n); out.append('    ' + n.text); need -= k; self.nops_added += 1
            hist.append(ins)
            if len(hist) > 64: hist = hist[-40:]
            out.append('    ' + ins.text)
        return '\n'.join(out) + '\n'

def kernel_desc(name, vgpr, agpr, sgpr=100, extra=''):
    acc = (vgpr + 3) // 4 * 4
    nfv = acc + agpr if agpr else vgpr
    return '''.section .rodata,"a"
.p2align 6
.amdhsa_kernel %s
  .amdhsa_next_free_vgpr %d
  .amdhsa_next_free_sgpr %d
  .amdhsa_accum_offset %d
  .amdhsa_group_segment_fixed_size 0
  .amdhsa_kernarg_size 112
  .amdhsa_user_sgpr_count 2
  .amdhsa_user_sgpr_kernarg_segment_ptr 1
  .amdhsa_system_sgpr_workgroup_id_x 1
  .amdhsa_float_denorm_mode_32 3
%s.end_amdhsa_kernel
''' % (name, nfv, sgpr, acc, extra)

def kernel_head(name):
    return '''.text
.globl %s
.p2align 8
.type %s,@function
%s:
''' % (name, name, name)
```

```python
import sys
from asmlib import *

WS_X = 0
WS_QABS = 0x100000
WS_QPB = 0x140000
WS_PA = 0x200000
WS_SA = 0x600000
WS_PB = 0x610000
WS_SB = 0x650000
WS_OPA = 0x700000
WS_OPB = 0x900000
WS_SIZE = 0x10000000
CSCALE = 0.08838834764831845 * 1.4426950408889634
import struct
def f2u(x): return struct.unpack('<I', struct.pack('<f', x))[0]

S_WAVE = 3
P_AX, P_CKV, P_WQ, P_WUK, P_WUV, P_WO, P_BX, P_K, P_V, P_BWQ, P_BWO, P_OUT, P_DBG, P_WS = 4, 6, 8, 10, 12, 14, 16, 18, 20, 22, 24, 26, 28, 30
S_H, S_J, S_XCD, S_T = 32, 33, 34, 35
S_T0, S_T1, S_T2, S_T3, S_T4, S_T5 = 36, 37, 38, 39, 40, 41
SRD_WS = 44
SRD_A = 48
SRD_B = 52
SRD_C = 56
SRD_D = 60
S_EX = 64
V_TID, V_LANE = 0, 1
V_SEL = 2

def srd(a, dst, ptr, size, off=None):
    if off is None:
        a('s_mov_b32 s%d, s%d' % (dst, ptr)); a('s_and_b32 s%d, s%d, 0xffff' % (dst + 1, ptr + 1))
    else:
        a('s_add_u32 s%d, s%d, s%d' % (dst, ptr, off)); a('s_addc_u32 s%d, s%d, 0' % (dst + 1, ptr + 1)); a('s_and_b32 s%d, s%d, 0xffff' % (dst + 1, dst + 1))
    a('s_mov_b32 s%d, 0x%x' % (dst + 2, size)); a('s_mov_b32 s%d, 0x20000' % (dst + 3))

def S(q): return 's[%d:%d]' % (q, q + 3)
def V(b, n=4): return 'v[%d:%d]' % (b, b + n - 1) if n > 1 else 'v%d' % b

def prologue(a, nwg=256):
    a('s_cmp_ge_u32 s2, %d' % nwg)
    a('s_cbranch_scc1 L_end_%s' % a.kname)
    a('s_load_dwordx16 s[4:19], s[0:1], 0')
    a('s_load_dwordx8 s[20:27], s[0:1], 64')
    a('s_load_dwordx4 s[28:31], s[0:1], 96')
    a('v_lshrrev_b32 v1, 6, v0')
    a('s_and_b32 s%d, s2, 7' % S_XCD)
    a('v_readfirstlane_b32 s%d, v1' % S_WAVE)
    a('s_lshr_b32 s%d, s2, 3' % S_T)
    a('v_and_b32 v%d, 63, v0' % V_LANE)
    a('s_and_b32 s%d, s%d, 3' % (S_H, S_T)); a('s_lshl_b32 s%d, s%d, 2' % (S_T0, S_XCD)); a('s_add_u32 s%d, s%d, s%d' % (S_H, S_H, S_T0))
    a('s_lshr_b32 s%d, s%d, 2' % (S_J, S_T))
    a('s_waitcnt lgkmcnt(0)')
    srd(a, SRD_WS, P_WS, WS_SIZE)

def make_sel(a, t0=10, t1=11, t2=12, t3=13):
    a('v_and_b32 v%d, 7, v%d' % (t0, V_LANE))
    a('v_and_b32 v%d, 1, v%d' % (t1, t0))
    a('v_lshrrev_b32 v%d, 1, v%d' % (t0, t0))
    for par in range(2):
        even = 0x0c0c0302 if par else 0x0c0c0100
        odd = 0x03020c0c if par else 0x01000c0c
        a('v_mov_b32 v%d, 0x%x' % (t2, odd))
        a('v_cmp_eq_u32 vcc, 1, v%d' % t1)
        a('v_cndmask_b32 v%d, 0x%x, v%d, vcc' % (t3, even, t2)) if False else None
        a('v_mov_b32 v%d, 0x%x' % (t3, even))
        a('v_cndmask_b32 v%d, v%d, v%d, vcc' % (t3, t3, t2))
        a('v_mov_b32 v%d, 0x0c0c0c0c' % t2)
        for r in range(4):
            a('v_cmp_eq_u32 vcc, %d, v%d' % (r, t0))
            a('v_cndmask_b32 v%d, v%d, v%d, vcc' % (V_SEL + 2 * r + par, t2, t3))

def diagA(a, dst, src, par):
    for r in range(4):
        a('v_perm_b32 v%d, v%d, v%d, v%d' % (dst + r, src, src, V_SEL + 2 * r + par))

def xor16(a, op, v, t):
    a('v_mov_b32 v%d, v%d' % (t, v)); a('v_permlane16_swap_b32 v%d, v%d' % (v, t)); a('%s v%d, v%d, v%d' % (op, v, v, t))
def xor32(a, op, v, t):
    a('v_mov_b32 v%d, v%d' % (t, v)); a('v_permlane32_swap_b32 v%d, v%d' % (v, t)); a('%s v%d, v%d, v%d' % (op, v, v, t))

def end_kernel(a):
    a.label('L_end_%s' % a.kname); a('s_endpgm')

def k1():
    a = Asm(); a.kname = 'k1'
    prologue(a)
    make_sel(a)
    L = V_LANE
    VW, VX, VX2, VUK, VT = 10, 11, 12, 13, 14
    a('v_lshrrev_b32 v%d, 4, v%d' % (VT, L))
    a('v_and_b32 v%d, 15, v%d' % (VUK, L))
    a('v_lshlrev_b32 v%d, 17, v%d' % (VW, VT))
    a('v_lshl_add_u32 v%d, v%d, 4, v%d' % (VW, VUK, VW))
    a('v_lshrrev_b32 v%d, 3, v%d' % (VX, VUK))
    a('v_lshlrev_b32 v%d, 10, v%d' % (VX, VX))
    a('v_lshl_add_u32 v%d, v%d, 5, v%d' % (VX, VT, VX))
    a('v_lshlrev_b32 v%d, 13, v%d' % (VUK, VUK))
    a('v_lshl_add_u32 v%d, v%d, 4, v%d' % (VUK, VT, VUK))
    srd(a, SRD_A, P_WQ, 4 << 20); srd(a, SRD_B, P_BWQ, 4 << 20); srd(a, SRD_C, P_WUK, 4 << 20)
    srd(a, SRD_D, P_AX, 4096)
    XR, XB, WR, WB, WK, AT, D1, D2 = 16, 32, 36, 100, 108, 124, 132, 140
    a('s_lshl_b32 s%d, s%d, 7' % (S_T0, S_WAVE))
    a('s_add_u32 s%d, s%d, 2048' % (S_T1, S_T0))
    a('buffer_load_dwordx4 %s, v%d, %s, s%d offen' % (V(XR), VX, S(SRD_D), S_T0))
    a('buffer_load_dwordx4 %s, v%d, %s, s%d offen offset:16' % (V(XR + 4), VX, S(SRD_D), S_T0))
    a('buffer_load_dwordx4 %s, v%d, %s, s%d offen' % (V(XR + 8), VX, S(SRD_D), S_T1))
    a('buffer_load_dwordx4 %s, v%d, %s, s%d offen offset:16' % (V(XR + 12), VX, S(SRD_D), S_T1))
    srd(a, SRD_D, P_BX, 4096)
    a('s_lshl_b32 s%d, s%d, 7' % (S_T0, S_J)); a('s_lshl_b32 s%d, s%d, 2' % (S_T1, S_WAVE)); a('s_add_u32 s%d, s%d, s%d' % (S_T0, S_T0, S_T1))
    a('s_add_u32 s%d, s%d, 2048' % (S_T1, S_T0))
    a('buffer_load_dword v%d, v%d, %s, s%d offen' % (XB, VX, S(SRD_D), S_T0))
    a('buffer_load_dword v%d, v%d, %s, s%d offen' % (XB + 1, VX, S(SRD_D), S_T1))
    tok_x = a.vm_token()
    a('s_lshl_b32 s%d, s%d, 19' % (S_T0, S_WAVE)); a('s_lshl_b32 s%d, s%d, 8' % (S_T1, S_H)); a('s_add_u32 s%d, s%d, s%d' % (S_T0, S_T0, S_T1))
    tokW = []
    for t in range(16):
        a('s_add_u32 s%d, s%d, %d' % (S_T2, S_T0, t * 8192))
        a('buffer_load_dwordx4 %s, v%d, %s, s%d offen nt' % (V(WR + 4 * t), VW, S(SRD_A), S_T2)); tokW.append(a.vm_token())
    a('s_lshl_b32 s%d, s%d, 19' % (S_T0, S_J)); a('s_add_u32 s%d, s%d, s%d' % (S_T0, S_T0, S_T1))
    a('s_lshl_b32 s%d, s%d, 14' % (S_T2, S_WAVE)); a('s_add_u32 s%d, s%d, s%d' % (S_T0, S_T0, S_T2))
    a('s_add_u32 s%d, s%d, 8192' % (S_T2, S_T0))
    a('buffer_load_dwordx4 %s, v%d, %s, s%d offen nt' % (V(WB), VW, S(SRD_B), S_T0))
    a('buffer_load_dwordx4 %s, v%d, %s, s%d offen nt' % (V(WB + 4), VW, S(SRD_B), S_T2)); tokB = a.vm_token()
    a('s_and_b32 s%d, s%d, 3' % (S_T2, S_WAVE)); a('s_lshl_b32 s%d, s%d, 17' % (S_T2, S_T2))
    a('s_lshl_b32 s%d, s%d, 19' % (S_T0, S_J)); a('s_add_u32 s%d, s%d, s%d' % (S_T0, S_T0, S_T2)); a('s_add_u32 s%d, s%d, s%d' % (S_T0, S_T0, S_T1))
    for s in range(4):
        a('buffer_load_dwordx4 %s, v%d, %s, s%d offen offset:%d nt' % (V(WK + 4 * s), VUK, S(SRD_C), S_T0, s * 64))
    tokK = a.vm_token()
    for i in range(8): a('v_mov_b32 v%d, 0' % (D1 + i)); a('v_mov_b32 v%d, 0' % (D2 + i))
    for t in range(16):
        a.wait_vm(tokW[t])
        for p in range(2): diagA(a, AT + 4 * p, XR + 8 * p + t // 2, t % 2)
        for p in range(2): a('v_mfma_f32_16x16x32_bf16 %s, %s, %s, %s' % (V(D1 + 4 * p), V(AT + 4 * p), V(WR + 4 * t), V(D1 + 4 * p)))
    a.wait_vm(tokB)
    for i in range(2):
        for p in range(2): diagA(a, AT + 4 * p, XB + p, i)
        for p in range(2): a('v_mfma_f32_16x16x32_bf16 %s, %s, %s, %s' % (V(D2 + 4 * p), V(AT + 4 * p), V(WB + 4 * i), V(D2 + 4 * p)))
    VA, VB = 10, 11
    a('v_lshrrev_b32 v%d, 5, v%d' % (VA, L)); a('v_lshlrev_b32 v%d, 9, v%d' % (VA, VA))
    a('v_and_b32 v%d, 15, v%d' % (VB, L)); a('v_lshl_add_u32 v%d, v%d, 5, v%d' % (VA, VB, VA))
    a('v_bfe_u32 v%d, v%d, 4, 1' % (VB, L)); a('v_lshl_add_u32 v%d, v%d, 4, v%d' % (VA, VB, VA))
    a('s_lshl_b32 s%d, s%d, 11' % (S_T0, S_WAVE)); a('v_add_u32 v%d, s%d, v%d' % (VA, S_T0, VA))
    for p in range(2):
        a('ds_write_b128 v%d, %s offset:%d' % (VA, V(D1 + 4 * p), p * 1024))
        a('ds_write_b128 v%d, %s offset:%d' % (VA, V(D2 + 4 * p), 16384 + p * 1024))
    a('s_waitcnt lgkmcnt(0)'); a('s_barrier')
    a('v_lshlrev_b32 v%d, 2, v%d' % (VA, V_TID))
    R = 36
    for k in range(8): a('ds_read_b32 v%d, v%d offset:%d' % (R + k, VA, k * 2048))
    for k in range(8): a('ds_read_b32 v%d, v%d offset:%d' % (R + 8 + k, VA, 16384 + k * 2048))
    a('s_waitcnt lgkmcnt(8)')
    for k in range(1, 8): a('v_add_f32 v%d, v%d, v%d' % (R, R, R + k))
    a('v_cvt_pk_bf16_f32 v%d, v%d, v%d' % (R, R, R))
    a('v_lshlrev_b32 v%d, 1, v%d' % (VB, V_TID))
    a('ds_write_b16 v%d, v%d offset:32768' % (VB, R))
    a('s_waitcnt lgkmcnt(1)')
    for k in range(1, 8): a('v_add_f32 v%d, v%d, v%d' % (R + 8, R + 8, R + 8 + k))
    a('s_lshl_b32 s%d, s%d, 3' % (S_T0, S_H)); a('s_add_u32 s%d, s%d, s%d' % (S_T0, S_T0, S_J)); a('s_lshl_b32 s%d, s%d, 11' % (S_T0, S_T0)); a('s_add_u32 s%d, s%d, 0x%x' % (S_T0, S_T0, WS_QPB))
    a('buffer_store_dword v%d, v%d, %s, s%d offen' % (R + 8, VA, S(SRD_WS), S_T0))
    a('s_waitcnt lgkmcnt(0)'); a('s_barrier')
    a('s_cmp_ge_u32 s%d, 4' % S_WAVE); a('s_cbranch_scc1 L_end_k1')
    a('v_and_b32 v%d, 3, v%d' % (VA, L)); a('v_lshlrev_b32 v%d, 8, v%d' % (VA, VA)); a('v_lshrrev_b32 v%d, 4, v%d' % (VB, L)); a('v_lshl_add_u32 v%d, v%d, 4, v%d' % (VA, VB, VA))
    QF = 36
    for s in range(4): a('ds_read_b128 %s, v%d offset:%d' % (V(QF + 4 * s), VA, 32768 + s * 64))
    for i in range(4): a('v_mov_b32 v%d, 0' % (D1 + i))
    a.wait_vm(tokK); a('s_waitcnt lgkmcnt(0)')
    for s in range(4): a('v_mfma_f32_16x16x32_bf16 %s, %s, %s, %s' % (V(D1), V(WK + 4 * s), V(QF + 4 * s), V(D1)))
    a('v_cvt_pk_bf16_f32 v%d, v%d, v%d' % (QF, D1, D1 + 1)); a('v_cvt_pk_bf16_f32 v%d, v%d, v%d' % (QF + 1, D1 + 2, D1 + 3))
    a('v_and_b32 v%d, 15, v%d' % (VA, L)); a('v_cmp_gt_u32 vcc, 4, v%d' % VA)
    a('v_lshlrev_b32 v%d, 15, v%d' % (VA, VA)); a('v_lshl_add_u32 v%d, v%d, 3, v%d' % (VA, VB, VA))
    a('s_lshl_b32 s%d, s%d, 10' % (S_T0, S_H)); a('s_lshl_b32 s%d, s%d, 7' % (S_T1, S_J)); a('s_add_u32 s%d, s%d, s%d' % (S_T0, S_T0, S_T1))
    a('s_lshl_b32 s%d, s%d, 5' % (S_T1, S_WAVE)); a('s_add_u32 s%d, s%d, s%d' % (S_T0, S_T0, S_T1)); a('s_add_u32 s%d, s%d, 0x%x' % (S_T0, S_T0, WS_QABS))
    a('s_and_saveexec_b64 s[%d:%d], vcc' % (S_EX, S_EX + 1))
    a('buffer_store_dwordx2 %s, v%d, %s, s%d offen' % (V(QF, 2), VA, S(SRD_WS), S_T0))
    end_kernel(a)
    return a, 160, 0, 36864

def fswz(k): return ((k & 3) << 2) | ((k >> 2) & 3)

def attn_A(a):
    L = V_LANE
    S_B, S_S = 66, 67
    QA = 131072
    a('s_lshr_b32 s%d, s%d, 1' % (S_B, S_XCD))
    a('s_and_b32 s%d, s%d, 1' % (S_S, S_XCD)); a('s_lshl_b32 s%d, s%d, 4' % (S_S, S_S)); a('s_add_u32 s%d, s%d, s%d' % (S_S, S_S, S_T))
    a('s_lshl_b32 s%d, s%d, 22' % (S_T0, S_B)); a('s_lshl_b32 s%d, s%d, 17' % (S_T1, S_S)); a('s_add_u32 s%d, s%d, s%d' % (S_T0, S_T0, S_T1))
    srd(a, SRD_A, P_CKV, 131072, S_T0)
    VL16, VT0, VT1 = 10, 11, 12
    a('v_lshlrev_b32 v%d, 4, v%d' % (VL16, L))
    a('s_lshl_b32 s%d, s%d, 14' % (S_T0, S_WAVE))
    for i in range(16):
        vt = VT0 + (i % 2)
        a('v_xor_b32 v%d, %d, v%d' % (vt, fswz(i) * 16, VL16))
        a('s_add_u32 s%d, s%d, %d' % (S_T1, S_T0, i * 1024))
        a('s_mov_b32 m0, s%d' % S_T1)
        a('buffer_load_dwordx4 v%d, %s, s%d offen nt lds' % (vt, S(SRD_A), S_T1))
    a('s_lshl_b32 s%d, s%d, 15' % (S_T0, S_B)); a('s_add_u32 s%d, s%d, 0x%x' % (S_T0, S_T0, WS_QABS))
    a('s_lshl_b32 s%d, s%d, 12' % (S_T2, S_WAVE))
    a('s_add_u32 s%d, s%d, s%d' % (S_T0, S_T0, S_T2))
    a('s_and_b32 s%d, s%d, 3' % (S_T3, S_WAVE)); a('s_lshl_b32 s%d, s%d, 4' % (S_T3, S_T3))
    for i in range(4):
        vt = VT0 + (i % 2)
        a('s_or_b32 s%d, s%d, %d' % (S_T4, S_T3, i << 6))
        a('v_xor_b32 v%d, s%d, v%d' % (vt, S_T4, VL16))
        a('s_add_u32 s%d, s%d, %d' % (S_T1, S_T2, QA + i * 1024)); a('s_mov_b32 m0, s%d' % S_T1)
        a('s_add_u32 s%d, s%d, %d' % (S_T1, S_T0, i * 1024))
        a('buffer_load_dwordx4 v%d, %s, s%d offen lds' % (vt, S(SRD_WS), S_T1))
    a('s_waitcnt vmcnt(0)'); a('s_barrier')
    lab_w47 = a.newlabel('attnA_idle')
    a('s_cmp_ge_u32 s%d, 4' % S_WAVE); a('s_cbranch_scc1 ' + lab_w47)
    AK, AQ = 16, 24
    VI, VG, VF = 11, 12, 13
    a('v_and_b32 v%d, 31, v%d' % (VI, L)); a('v_lshrrev_b32 v%d, 5, v%d' % (VG, L))
    a('v_and_b32 v%d, 3, v%d' % (VF, VI)); a('v_lshlrev_b32 v%d, 2, v%d' % (VF, VF)); a('v_bfe_u32 v%d, v%d, 2, 2' % (14, VI)); a('v_or_b32 v%d, v%d, v14' % (VF, VF))
    a('v_xor_b32 v%d, v%d, v%d' % (VF, VF, VG)); a('v_lshlrev_b32 v%d, 4, v%d' % (VF, VF))
    a('v_lshl_add_u32 v%d, v%d, 10, v%d' % (VF, VI, VF))
    a('s_lshl_b32 s%d, s%d, 15' % (S_T0, S_WAVE))
    for u in range(8):
        a('v_xor_b32 v%d, %d, v%d' % (AQ + u, u * 32, VF))
        a('v_add_u32 v%d, s%d, v%d' % (AK + u, S_T0, AQ + u))
        a('v_add_u32 v%d, 0x%x, v%d' % (AQ + u, QA, AQ + u))
    SD = 32
    FA, FB = 48, 80
    NPF = 6
    toks = {}
    def rd(s2):
        a('ds_read_b128 %s, v%d offset:%d' % (V(FA + 4 * (s2 % 8)), AK + s2 % 8, (s2 // 8) * 256))
        a('ds_read_b128 %s, v%d offset:%d' % (V(FB + 4 * (s2 % 8)), AQ + s2 % 8, (s2 // 8) * 256))
        toks[s2] = a.lg_token()
    for s2 in range(NPF): rd(s2)
    for s2 in range(32):
        a.wait_lg(toks[s2])
        a('v_mfma_f32_32x32x16_bf16 %s, %s, %s, %s' % (V(SD, 16), V(FA + 4 * (s2 % 8)), V(FB + 4 * (s2 % 8)), V(SD, 16) if s2 else '0'))
        if s2 + NPF < 32: rd(s2 + NPF)
    VM, VT = 112, 113
    a('v_max3_f32 v%d, v%d, v%d, v%d' % (VM, SD, SD + 1, SD + 2))
    for r in range(3, 15, 2): a('v_max3_f32 v%d, v%d, v%d, v%d' % (VM, VM, SD + r, SD + r + 1))
    a('v_max_f32 v%d, v%d, v%d' % (VM, VM, SD + 15))
    xor32(a, 'v_max_f32', VM, VT)
    a.label(lab_w47.replace('idle', 'x'))
    a('s_barrier')
    VE = 114
    a('v_and_b32 v%d, 31, v%d' % (VE, L)); a('v_lshlrev_b32 v%d, 2, v%d' % (VE, VE))
    a('s_lshl_b32 s%d, s%d, 7' % (S_T0, S_WAVE)); a('v_add_u32 v%d, s%d, v%d' % (VT, S_T0, VE)); a('v_add_u32 v%d, 0x%x, v%d' % (VT, QA, VT))
    a('ds_write_b32 v%d, v%d' % (VT, VM))
    a('v_add_u32 v%d, 0x%x, v%d' % (VE, QA, VE))
    a('s_waitcnt lgkmcnt(0)'); a('s_barrier')
    for k in range(4): a('ds_read_b32 v%d, v%d offset:%d' % (116 + k, VE, k * 128))
    a('s_waitcnt lgkmcnt(0)')
    a('v_max3_f32 v%d, v116, v117, v118' % VM); a('v_max_f32 v%d, v%d, v119' % (VM, VM))
    a('s_mov_b32 s%d, 0x%x' % (S_T1, f2u(CSCALE)))
    a('v_mul_f32 v%d, s%d, v%d' % (VM, S_T1, VM))
    for r in range(16):
        a('v_fma_f32 v%d, v%d, s%d, -v%d' % (SD + r, SD + r, S_T1, VM))
    for r in range(16): a('v_exp_f32 v%d, v%d' % (SD + r, SD + r))
    VLs = 115
    a('v_add_f32 v%d, v%d, v%d' % (VLs, SD, SD + 1))
    for r in range(2, 16): a('v_add_f32 v%d, v%d, v%d' % (VLs, VLs, SD + r))
    xor32(a, 'v_add_f32', VLs, 116)
    a('ds_write_b32 v%d, v%d offset:512' % (VT, VLs))
    PF = 48
    for q in range(8): a('v_cvt_pk_bf16_f32 v%d, v%d, v%d' % (PF + q, SD + 2 * q, SD + 2 * q + 1))
    a('s_lshl_b32 s%d, s%d, 11' % (S_T0, S_WAVE)); a('v_add_u32 v%d, s%d, v%d' % (116, S_T0, VL16)); a('v_add_u32 v116, 0x%x, v116' % (QA + 1024))
    a('ds_write_b128 v116, %s' % V(PF)); a('ds_write_b128 v116, %s offset:1024' % V(PF + 4))
    a('s_waitcnt lgkmcnt(0)'); a('s_barrier')
    PFR = 48
    a('v_add_u32 v116, 0x%x, v%d' % (QA + 1024, VL16))
    for kk in range(8): a('ds_read_b128 %s, v116 offset:%d' % (V(PFR + 4 * kk), kk * 1024))
    for k in range(4): a('ds_read_b32 v%d, v%d offset:%d' % (120 + k, VE, 512 + k * 128))
    TB = 16
    vr, vc, vg, vG, vb = 117, 118, 119, 124, 125
    a('v_bfe_u32 v%d, v%d, 2, 2' % (vr, L)); a('v_and_b32 v%d, 3, v%d' % (vc, L)); a('v_lshrrev_b32 v%d, 5, v%d' % (vg, L)); a('v_bfe_u32 v%d, v%d, 4, 1' % (vG, L))
    a('v_lshl_add_u32 v%d, v%d, 2, v%d' % (vb, vg, vr)); a('v_lshlrev_b32 v%d, 10, v%d' % (vb, vb))
    a('v_lshlrev_b32 v%d, 1, v%d' % (vG, vG)); a('v_lshrrev_b32 v126, 1, v%d' % vc); a('v_add_u32 v%d, v%d, v126' % (vG, vG))
    a('v_xor_b32 v%d, v%d, v%d' % (vG, vG, vg)); a('v_lshl_add_u32 v%d, v%d, 2, v%d' % (vG, vr, vG))
    a('v_lshl_add_u32 v%d, v%d, 4, v%d' % (vb, vG, vb))
    a('v_and_b32 v%d, 1, v%d' % (vc, vc)); a('v_lshl_add_u32 v%d, v%d, 3, v%d' % (vb, vc, vb))
    a('s_lshl_b32 s%d, s%d, 8' % (S_T0, S_WAVE)); a('v_add_u32 v%d, s%d, v%d' % (vb, S_T0, vb))
    for cc in range(4):
        for z in range(2):
            a('v_xor_b32 v%d, %d, v%d' % (TB + 2 * cc + z, 64 * cc + 32 * z, vb))
            a('v_add_u32 v%d, 0x10000, v%d' % (TB + 8 + 2 * cc + z, TB + 2 * cc + z))
    ACC = 128
    CF = 192
    seq = [(kk, cc) for kk in range(8) for cc in range(4)]
    toks = {}
    def rdc(n):
        kk, cc = seq[n]
        for z in range(2):
            reg = TB + (8 if kk >= 4 else 0) + 2 * cc + z
            a('ds_read_b64_tr_b16 %s, v%d offset:%d' % (V(CF + 4 * (n % 8) + 2 * z, 2), reg, (kk % 4) * 16384 + z * 8192))
        toks[n] = a.lg_token()
    NPF = 6
    for n in range(NPF): rdc(n)
    for n in range(32):
        kk, cc = seq[n]
        a.wait_lg(toks[n])
        a('v_mfma_f32_32x32x16_bf16 %s, %s, %s, %s' % (V(ACC + 16 * cc, 16), V(PFR + 4 * kk), V(CF + 4 * (n % 8)), V(ACC + 16 * cc, 16) if kk else '0'))
        if n + NPF < 32: rdc(n + NPF)
    a('v_add_f32 v120, v120, v121'); a('v_add_f32 v122, v122, v123'); a('v_add_f32 v121, v120, v122'); a('v_mov_b32 v120, v%d' % VM)
    a('v_and_b32 v117, 31, v%d' % L); a('v_lshlrev_b32 v117, 10, v117')
    a('s_lshl_b32 s%d, s%d, 8' % (S_T0, S_B)); a('s_lshl_b32 s%d, s%d, 3' % (S_T1, S_S)); a('s_add_u32 s%d, s%d, s%d' % (S_T0, S_T0, S_T1)); a('s_add_u32 s%d, s%d, 0x%x' % (S_T0, S_T0, WS_SA))
    sk = a.newlabel('nostat')
    a('s_cmp_lg_u32 s%d, 0' % S_WAVE); a('s_cbranch_scc1 ' + sk)
    a('s_mov_b32 exec_lo, -1'); a('s_mov_b32 exec_hi, 0')
    a('buffer_store_dwordx2 v[120:121], v117, %s, s%d offen' % (S(SRD_WS), S_T0))
    a('s_mov_b64 exec, -1')
    a.label(sk)
    a('v_lshrrev_b32 v117, 5, v%d' % L); a('v_lshlrev_b32 v117, 19, v117'); a('v_and_b32 v118, 31, v%d' % L); a('v_lshl_add_u32 v117, v118, 2, v117')
    a('s_lshl_b32 s%d, s%d, 15' % (S_T0, S_WAVE)); a('s_lshr_b32 s%d, s%d, 1' % (S_T1, S_B)); a('s_lshl_b32 s%d, s%d, 13' % (S_T1, S_T1)); a('s_add_u32 s%d, s%d, s%d' % (S_T0, S_T0, S_T1))
    a('s_lshl_b32 s%d, s%d, 8' % (S_T1, S_S)); a('s_add_u32 s%d, s%d, s%d' % (S_T0, S_T0, S_T1))
    a('s_and_b32 s%d, s%d, 1' % (S_T1, S_B)); a('s_lshl_b32 s%d, s%d, 7' % (S_T1, S_T1)); a('s_add_u32 s%d, s%d, s%d' % (S_T0, S_T0, S_T1)); a('s_add_u32 s%d, s%d, 0x%x' % (S_T0, S_T0, WS_PA))
    n = 0
    for z in range(2):
        for r in range(16):
            vt = 192 + (n % 8); n += 1
            a('v_cvt_pk_bf16_f32 v%d, v%d, v%d' % (vt, ACC + 16 * (2 * z) + r, ACC + 16 * (2 * z + 1) + r))
            hh = 8 * (r // 4) + r % 4
            a('s_add_u32 s%d, s%d, %d' % (S_T1, S_T0, hh * 131072 + z * 16384))
            a('buffer_store_dword v%d, v117, %s, s%d offen' % (vt, S(SRD_WS), S_T1))
    a('s_branch L_end_%s' % a.kname)
    a.label(lab_w47)
    a('s_barrier'); a('s_barrier'); a('s_barrier')
    a('s_branch L_end_%s' % a.kname)

def attn_B(a):
    L = V_LANE
    S_B, S_KVH, S_SP, S_U = 66, 67, 68, 69
    a('s_lshl_b32 s%d, s%d, 4' % (S_U, S_XCD)); a('s_add_u32 s%d, s%d, s%d' % (S_U, S_U, S_T)); a('s_sub_u32 s%d, s%d, 16' % (S_U, S_U))
    a('s_lshr_b32 s%d, s%d, 5' % (S_B, S_U)); a('s_bfe_u32 s%d, s%d, 0x30002' % (S_KVH, S_U)); a('s_and_b32 s%d, s%d, 3' % (S_SP, S_U))
    a('s_lshr_b32 s%d, s%d, 2' % (S_T0, S_U)); a('s_lshl_b32 s%d, s%d, 20' % (S_T0, S_T0)); a('s_lshl_b32 s%d, s%d, 16' % (S_T1, S_SP)); a('s_add_u32 s%d, s%d, s%d' % (S_T0, S_T0, S_T1))
    a('s_add_u32 s%d, s%d, %d' % (S_T0, S_T0, 3072 * 256))
    srd(a, SRD_A, P_K, 65536, S_T0); srd(a, SRD_B, P_V, 65536, S_T0)
    VK, VV, VT0, VT1 = 16, 20, 10, 11
    a('v_lshrrev_b32 v%d, 4, v%d' % (VT0, L)); a('v_and_b32 v%d, 15, v%d' % (VT1, L))
    for n4 in range(4):
        a('v_add_u32 v12, %d, v%d' % (4 * n4, VT0)); a('v_xor_b32 v12, v12, v%d' % VT1); a('v_lshlrev_b32 v12, 4, v12'); a('v_lshl_add_u32 v%d, v%d, 8, v12' % (VK + n4, VT0))
    for n2 in range(2):
        a('v_add_u32 v12, %d, v%d' % (4 * n2, VT0)); a('v_lshlrev_b32 v12, 1, v12'); a('v_xor_b32 v12, v12, v%d' % VT1); a('v_lshlrev_b32 v12, 4, v12'); a('v_lshl_add_u32 v%d, v%d, 8, v12' % (VV + n2, VT0))
    a('s_lshl_b32 s%d, s%d, 13' % (S_T0, S_WAVE))
    for n in range(8):
        a('s_add_u32 s%d, s%d, %d' % (S_T1, S_T0, n * 1024)); a('s_mov_b32 m0, s%d' % S_T1)
        a('buffer_load_dwordx4 v%d, %s, s%d offen nt lds' % (VK + n % 4, S(SRD_A), S_T1))
    for n in range(8):
        a('s_add_u32 s%d, s%d, %d' % (S_T1, S_T0, n * 1024)); a('s_add_u32 s%d, s%d, 65536' % (S_T2, S_T1)); a('s_mov_b32 m0, s%d' % S_T2)
        a('buffer_load_dwordx4 v%d, %s, s%d offen nt lds' % (VV + n % 2, S(SRD_B), S_T1))
    QB = 131072
    a('v_lshrrev_b32 v12, 7, v%d' % V_TID); a('v_lshlrev_b32 v12, 14, v12'); a('v_and_b32 v13, 127, v%d' % V_TID); a('v_lshl_add_u32 v12, v13, 2, v12')
    a('s_lshl_b32 s%d, s%d, 16' % (S_T0, S_KVH)); a('s_lshl_b32 s%d, s%d, 9' % (S_T1, S_B)); a('s_add_u32 s%d, s%d, s%d' % (S_T0, S_T0, S_T1)); a('s_add_u32 s%d, s%d, 0x%x' % (S_T0, S_T0, WS_QPB))
    for jj in range(8):
        a('s_add_u32 s%d, s%d, %d' % (S_T1, S_T0, jj * 2048))
        a('buffer_load_dword v%d, v12, %s, s%d offen' % (24 + jj, S(SRD_WS), S_T1))
    a('s_waitcnt vmcnt(0)')
    for jj in range(1, 8): a('v_add_f32 v24, v24, v%d' % (24 + jj))
    a('v_cvt_pk_bf16_f32 v24, v24, v24')
    a('v_lshlrev_b32 v12, 1, v%d' % V_TID); a('v_add_u32 v12, 0x%x, v12' % QB)
    a('ds_write_b16 v12, v24')
    a('s_waitcnt lgkmcnt(0)'); a('s_barrier')
    AK = 16
    a('v_xor_b32 v12, v%d, v%d' % (VT0, VT1)); a('v_lshlrev_b32 v12, 4, v12'); a('v_lshl_add_u32 v12, v%d, 8, v12' % VT1)
    a('s_lshl_b32 s%d, s%d, 13' % (S_T0, S_WAVE)); a('v_add_u32 v12, s%d, v12' % S_T0)
    for s in range(4): a('v_xor_b32 v%d, %d, v12' % (AK + s, 64 * s))
    a('v_and_b32 v13, 3, v%d' % L); a('v_lshlrev_b32 v13, 8, v13'); a('v_lshl_add_u32 v13, v%d, 4, v13' % VT0); a('v_add_u32 v13, 0x%x, v13' % QB)
    QF, KF, SD = 24, 40, 72
    for s in range(4): a('ds_read_b128 %s, v13 offset:%d' % (V(QF + 4 * s), s * 64))
    for T in range(2):
        for s in range(4): a('ds_read_b128 %s, v%d offset:%d' % (V(KF + 16 * T + 4 * s), AK + s, T * 4096))
    a('s_waitcnt lgkmcnt(0)')
    for T in range(2):
        for s in range(4):
            a('v_mfma_f32_16x16x32_bf16 %s, %s, %s, %s' % (V(SD + 4 * T), V(KF + 16 * T + 4 * s), V(QF + 4 * s), V(SD + 4 * T) if s else '0'))
    VM, VT = 80, 81
    a('v_max3_f32 v%d, v%d, v%d, v%d' % (VM, SD, SD + 1, SD + 2)); a('v_max3_f32 v%d, v%d, v%d, v%d' % (VM, VM, SD + 3, SD + 4)); a('v_max3_f32 v%d, v%d, v%d, v%d' % (VM, VM, SD + 5, SD + 6)); a('v_max_f32 v%d, v%d, v%d' % (VM, VM, SD + 7))
    xor16(a, 'v_max_f32', VM, VT); xor32(a, 'v_max_f32', VM, VT)
    MX = QB + 1024
    a('v_and_b32 v82, 3, v%d' % L); a('v_lshlrev_b32 v82, 5, v82'); a('v_add_u32 v82, 0x%x, v82' % MX)
    a('s_lshl_b32 s%d, s%d, 2' % (S_T0, S_WAVE)); a('v_add_u32 v83, s%d, v82' % S_T0)
    a('ds_write_b32 v83, v%d' % VM)
    a('s_waitcnt lgkmcnt(0)'); a('s_barrier')
    a('ds_read_b128 v[84:87], v82'); a('ds_read_b128 v[88:91], v82 offset:16')
    a('s_waitcnt lgkmcnt(0)')
    a('v_max3_f32 v%d, v84, v85, v86' % VM); a('v_max3_f32 v%d, v%d, v87, v88' % (VM, VM)); a('v_max3_f32 v%d, v%d, v89, v90' % (VM, VM)); a('v_max_f32 v%d, v%d, v91' % (VM, VM))
    a('s_mov_b32 s%d, 0x%x' % (S_T1, f2u(CSCALE)))
    a('v_mul_f32 v%d, s%d, v%d' % (VM, S_T1, VM))
    for r in range(8): a('v_fma_f32 v%d, v%d, s%d, -v%d' % (SD + r, SD + r, S_T1, VM))
    for r in range(8): a('v_exp_f32 v%d, v%d' % (SD + r, SD + r))
    a('v_add_f32 v84, v%d, v%d' % (SD, SD + 1))
    for r in range(2, 8): a('v_add_f32 v84, v84, v%d' % (SD + r))
    xor16(a, 'v_add_f32', 84, VT); xor32(a, 'v_add_f32', 84, VT)
    a('ds_write_b32 v83, v84 offset:128')
    for q in range(4): a('v_cvt_pk_bf16_f32 v%d, v%d, v%d' % (84 + q, SD + 2 * q, SD + 2 * q + 1))
    PX = QB + 2048
    a('v_lshlrev_b32 v88, 4, v%d' % L); a('v_add_u32 v88, 0x%x, v88' % PX)
    a('s_lshl_b32 s%d, s%d, 10' % (S_T0, S_WAVE)); a('v_add_u32 v89, s%d, v88' % S_T0)
    a('ds_write_b128 v89, v[84:87]')
    a('s_waitcnt lgkmcnt(0)'); a('s_barrier')
    PFR, VF, OD = 24, 92, 156
    for kk in range(8): a('ds_read_b128 %s, v88 offset:%d' % (V(PFR + 4 * kk), kk * 1024))
    a('ds_read_b128 v[84:87], v82 offset:128'); a('ds_read_b128 v[160:163], v82 offset:144')
    a('v_bfe_u32 v12, v%d, 2, 2' % L)
    a('v_and_b32 v13, 3, v%d' % L)
    a('v_lshl_add_u32 v14, v%d, 2, v12' % VT0)
    a('v_and_b32 v15, 7, v14'); a('v_lshlrev_b32 v15, 1, v15')
    a('v_lshrrev_b32 v16, 1, v13'); a('s_lshl_b32 s%d, s%d, 1' % (S_T0, S_WAVE)); a('v_add_u32 v16, s%d, v16' % S_T0)
    a('v_xor_b32 v16, v16, v15'); a('v_lshlrev_b32 v16, 4, v16'); a('v_lshl_add_u32 v16, v14, 8, v16')
    a('v_and_b32 v13, 1, v13'); a('v_lshl_add_u32 v16, v13, 3, v16'); a('v_add_u32 v16, 0x10000, v16')
    for kk in range(8):
        for z in range(2): a('ds_read_b64_tr_b16 %s, v16 offset:%d' % (V(VF + 4 * kk + 2 * z, 2), kk * 8192 + z * 4096))
    a('s_waitcnt lgkmcnt(0)')
    for kk in range(8):
        a('v_mfma_f32_16x16x32_bf16 %s, %s, %s, %s' % (V(OD), V(VF + 4 * kk), V(PFR + 4 * kk), V(OD) if kk else '0'))
    a('v_add_f32 v84, v84, v85'); a('v_add_f32 v86, v86, v87'); a('v_add_f32 v160, v160, v161'); a('v_add_f32 v162, v162, v163')
    a('v_add_f32 v84, v84, v86'); a('v_add_f32 v160, v160, v162'); a('v_add_f32 v85, v84, v160'); a('v_mov_b32 v84, v%d' % VM)
    a('v_lshlrev_b32 v12, 13, v%d' % VT1); a('v_lshl_add_u32 v12, v%d, 4, v12' % VT0)
    a('s_lshl_b32 s%d, s%d, 15' % (S_T0, S_KVH)); a('s_lshl_b32 s%d, s%d, 11' % (S_T1, S_B)); a('s_add_u32 s%d, s%d, s%d' % (S_T0, S_T0, S_T1))
    a('s_lshl_b32 s%d, s%d, 9' % (S_T1, S_SP)); a('s_add_u32 s%d, s%d, s%d' % (S_T0, S_T0, S_T1)); a('s_lshl_b32 s%d, s%d, 6' % (S_T1, S_WAVE)); a('s_add_u32 s%d, s%d, s%d' % (S_T2, S_T0, S_T1)); a('s_add_u32 s%d, s%d, 0x%x' % (S_T2, S_T2, WS_PB))
    a('v_cmp_gt_u32 vcc, 4, v%d' % VT1); a('s_and_saveexec_b64 s[%d:%d], vcc' % (S_EX, S_EX + 1))
    a('buffer_store_dwordx4 %s, v12, %s, s%d offen' % (V(OD), S(SRD_WS), S_T2))
    sk = a.newlabel('nostatB')
    a('s_cmp_lg_u32 s%d, 0' % S_WAVE); a('s_cbranch_scc1 ' + sk)
    a('s_mov_b64 exec, 0xf')
    a('v_lshlrev_b32 v12, 7, v%d' % L)
    a('s_lshr_b32 s%d, s%d, 6' % (S_T0, S_T0)); a('s_add_u32 s%d, s%d, 0x%x' % (S_T0, S_T0, WS_SB))
    a('buffer_store_dwordx2 v[84:85], v12, %s, s%d offen' % (S(SRD_WS), S_T0))
    a.label(sk)
    a('s_branch L_end_%s' % a.kname)

def k2():
    a = Asm(); a.kname = 'k2'
    prologue(a)
    lb = a.newlabel('roleB')
    a('s_cmp_ge_u32 s%d, 16' % S_T); a('s_cbranch_scc1 ' + lb)
    attn_A(a)
    a.label(lb)
    a.fence()
    attn_B(a)
    end_kernel(a)
    return a, 224, 0, 163840

def k3():
    a = Asm(); a.kname = 'k3'
    prologue(a)
    make_sel(a)
    L = V_LANE
    XC, XO, RED1, RED2, XD, RED3 = 0, 512, 1024, 1024 + 16384, 1024 + 32768, 36864
    VG, VJ = 10, 11
    a('v_lshrrev_b32 v%d, 4, v%d' % (VG, L)); a('v_and_b32 v%d, 15, v%d' % (VJ, L))
    srd(a, SRD_A, P_WUV, 4 << 20); srd(a, SRD_B, P_BWO, 4 << 20); srd(a, SRD_C, P_WO, 4 << 20)
    WUV, WBO, WO = 16, 24, 32
    a('v_lshlrev_b32 v12, 16, v%d' % VG); a('v_lshl_add_u32 v12, v%d, 4, v12' % VJ)
    a('s_lshl_b32 s%d, s%d, 6' % (S_T0, S_J)); a('s_add_u32 s%d, s%d, s%d' % (S_T0, S_T0, S_WAVE)); a('s_lshl_b32 s%d, s%d, 13' % (S_T0, S_T0))
    a('s_lshl_b32 s%d, s%d, 8' % (S_T1, S_H)); a('s_add_u32 s%d, s%d, s%d' % (S_T0, S_T0, S_T1)); a('s_add_u32 s%d, s%d, %d' % (S_T1, S_T0, 32 * 8192))
    a('buffer_load_dwordx4 %s, v12, %s, s%d offen nt' % (V(WUV), S(SRD_A), S_T0))
    a('buffer_load_dwordx4 %s, v12, %s, s%d offen nt' % (V(WUV + 4), S(SRD_A), S_T1))
    S_RG, S_CG = 66, 67
    a('s_lshr_b32 s%d, s%d, 2' % (S_T0, S_J)); a('s_lshl_b32 s%d, s%d, 1' % (S_RG, S_H)); a('s_add_u32 s%d, s%d, s%d' % (S_RG, S_RG, S_T0)); a('s_and_b32 s%d, s%d, 3' % (S_CG, S_J))
    a('v_lshlrev_b32 v13, 14, v%d' % VG); a('v_lshl_add_u32 v13, v%d, 4, v13' % VJ)
    a('s_lshl_b32 s%d, s%d, 6' % (S_T0, S_RG)); a('s_lshl_b32 s%d, s%d, 1' % (S_T1, S_WAVE)); a('s_add_u32 s%d, s%d, s%d' % (S_T0, S_T0, S_T1)); a('s_lshl_b32 s%d, s%d, 10' % (S_T0, S_T0))
    a('s_lshl_b32 s%d, s%d, 8' % (S_T1, S_CG)); a('s_add_u32 s%d, s%d, s%d' % (S_T0, S_T0, S_T1))
    a('buffer_load_dwordx4 %s, v13, %s, s%d offen nt' % (V(WBO), S(SRD_B), S_T0))
    a('buffer_load_dwordx4 %s, v13, %s, s%d offen offset:1024 nt' % (V(WBO + 4), S(SRD_B), S_T0))
    tok_small = a.vm_token()
    a('v_lshrrev_b32 v14, 5, v%d' % L); a('v_lshlrev_b32 v14, 14, v14'); a('v_and_b32 v15, 31, v%d' % L); a('v_lshl_add_u32 v14, v15, 4, v14')
    a('s_lshl_b32 s%d, s%d, 7' % (S_T0, S_H)); a('s_lshr_b32 s%d, s%d, 1' % (S_T1, S_WAVE)); a('s_lshl_b32 s%d, s%d, 5' % (S_T1, S_T1)); a('s_add_u32 s%d, s%d, s%d' % (S_T0, S_T0, S_T1)); a('s_lshl_b32 s%d, s%d, 10' % (S_T0, S_T0))
    a('s_and_b32 s%d, s%d, 1' % (S_T1, S_WAVE)); a('s_lshl_b32 s%d, s%d, 9' % (S_T1, S_T1)); a('s_add_u32 s%d, s%d, s%d' % (S_T0, S_T0, S_T1))
    tokO = []
    for t in range(16):
        a('s_add_u32 s%d, s%d, %d' % (S_T1, S_T0, t * 1024))
        a('buffer_load_dwordx4 %s, v14, %s, s%d offen' % (V(WO + 4 * t), S(SRD_C), S_T1)); tokO.append(a.vm_token())
    lb_b, lb_done = a.newlabel('combB'), a.newlabel('combdone')
    a('s_cmp_ge_u32 s%d, 2' % S_WAVE); a('s_cbranch_scc1 ' + lb_b)
    PD, ST = 96, 128
    a('v_lshlrev_b32 v100, 11, v%d' % VG); a('v_lshl_add_u32 v144, v%d, 4, v100' % VJ)
    a('s_lshl_b32 s%d, s%d, 3' % (S_T0, S_H)); a('s_add_u32 s%d, s%d, s%d' % (S_T0, S_T0, S_J)); a('s_lshl_b32 s%d, s%d, 1' % (S_T0, S_T0)); a('s_add_u32 s%d, s%d, s%d' % (S_T0, S_T0, S_WAVE))
    a('s_lshl_b32 s%d, s%d, 13' % (S_T0, S_T0)); a('s_add_u32 s%d, s%d, 0x%x' % (S_T0, S_T0, WS_PA))
    a('v_lshrrev_b32 v145, 3, v%d' % VJ); a('v_lshlrev_b32 v145, 8, v145'); a('v_lshl_add_u32 v145, v%d, 6, v145' % VG)
    a('s_lshl_b32 s%d, s%d, 10' % (S_T1, S_H)); a('s_lshl_b32 s%d, s%d, 9' % (S_T2, S_WAVE)); a('s_add_u32 s%d, s%d, s%d' % (S_T1, S_T1, S_T2)); a('s_add_u32 s%d, s%d, 0x%x' % (S_T1, S_T1, WS_SA))
    for k in range(4): a('buffer_load_dwordx4 %s, v145, %s, s%d offen offset:%d' % (V(ST + 4 * k), S(SRD_WS), S_T1, 16 * k))
    tok_st = a.vm_token()
    for t in range(8): a('buffer_load_dwordx4 %s, v144, %s, s%d offen offset:%d' % (V(PD + 4 * t), S(SRD_WS), S_T0, t * 256))
    a.wait_vm(tok_st)
    m = lambda t: ST + 2 * t
    l_ = lambda t: ST + 2 * t + 1
    a('v_max3_f32 v146, v%d, v%d, v%d' % (m(0), m(1), m(2))); a('v_max3_f32 v146, v146, v%d, v%d' % (m(3), m(4))); a('v_max3_f32 v146, v146, v%d, v%d' % (m(5), m(6))); a('v_max_f32 v146, v146, v%d' % m(7))
    xor16(a, 'v_max_f32', 146, 147); xor32(a, 'v_max_f32', 146, 147)
    for t in range(8): a('v_sub_f32 v%d, v%d, v146' % (m(t), m(t)))
    for t in range(8): a('v_exp_f32 v%d, v%d' % (m(t), m(t)))
    a('v_mul_f32 v148, v%d, v%d' % (m(0), l_(0)))
    for t in range(1, 8): a('v_fmac_f32 v148, v%d, v%d' % (m(t), l_(t)))
    xor16(a, 'v_add_f32', 148, 147); xor32(a, 'v_add_f32', 148, 147)
    a('v_rcp_f32 v148, v148')
    for t in range(8): a('v_mul_f32 v%d, v%d, v148' % (m(t), m(t)))
    for q in range(4): a('v_cvt_pk_bf16_f32 v%d, v%d, v%d' % (148 + q, m(2 * q), m(2 * q + 1)))
    a('s_waitcnt vmcnt(0)')
    for t in range(8):
        diagA(a, 152 + 4 * (t % 2), 148 + t // 2, t % 2)
        a('v_mfma_f32_16x16x32_bf16 v[160:163], %s, %s, %s' % (V(152 + 4 * (t % 2)), V(PD + 4 * t), 'v[160:163]' if t else '0'))
    a('v_cvt_pk_bf16_f32 v164, v160, v161'); a('v_cvt_pk_bf16_f32 v165, v162, v163')
    a('v_lshrrev_b32 v166, 5, v%d' % L); a('v_lshrrev_b32 v167, 3, v%d' % VJ); a('v_cmp_eq_u32 vcc, v166, v167')
    a('v_and_b32 v166, 1, v%d' % VG); a('v_lshlrev_b32 v166, 3, v166'); a('v_lshl_add_u32 v166, v%d, 4, v166' % VJ)
    a('s_lshl_b32 s%d, s%d, 8' % (S_T0, S_WAVE)); a('v_add_u32 v166, s%d, v166' % S_T0)
    a('s_and_saveexec_b64 s[%d:%d], vcc' % (S_EX, S_EX + 1))
    a('ds_write_b64 v166, v[164:165] offset:%d' % XC)
    a('s_mov_b64 exec, s[%d:%d]' % (S_EX, S_EX + 1))
    a('s_branch ' + lb_done)
    a.label(lb_b)
    a.fence()
    a('s_cmp_ge_u32 s%d, 6' % S_WAVE); a('s_cbranch_scc1 ' + lb_done)
    a('s_sub_u32 s%d, s%d, 2' % (S_T3, S_WAVE))
    a('s_lshl_b32 s%d, s%d, 2' % (S_T0, S_H)); a('s_add_u32 s%d, s%d, s%d' % (S_T0, S_T0, S_T3))
    a('s_lshl_b32 s%d, s%d, 5' % (S_T1, S_T0)); a('s_add_u32 s%d, s%d, 0x%x' % (S_T1, S_T1, WS_SB))
    a('s_lshl_b32 s%d, s%d, 11' % (S_T0, S_T0)); a('s_lshr_b32 s%d, s%d, 2' % (S_T2, S_J)); a('s_lshl_b32 s%d, s%d, 8' % (S_T2, S_T2)); a('s_add_u32 s%d, s%d, s%d' % (S_T0, S_T0, S_T2)); a('s_add_u32 s%d, s%d, 0x%x' % (S_T0, S_T0, WS_PB))
    a('v_lshlrev_b32 v144, 2, v%d' % L); a('v_mov_b32 v145, 0')
    a('buffer_load_dwordx4 v[128:131], v145, %s, s%d offen' % (S(SRD_WS), S_T1))
    a('buffer_load_dwordx4 v[132:135], v145, %s, s%d offen offset:16' % (S(SRD_WS), S_T1))
    for sp in range(4): a('buffer_load_dword v%d, v144, %s, s%d offen offset:%d' % (96 + sp, S(SRD_WS), S_T0, sp * 512))
    a('s_waitcnt vmcnt(0)')
    a('v_max3_f32 v146, v128, v130, v132'); a('v_max_f32 v146, v146, v134')
    for sp in range(4): a('v_sub_f32 v%d, v%d, v146' % (128 + 2 * sp, 128 + 2 * sp))
    for sp in range(4): a('v_exp_f32 v%d, v%d' % (128 + 2 * sp, 128 + 2 * sp))
    a('v_mul_f32 v148, v128, v129'); a('v_mul_f32 v149, v128, v96')
    for sp in range(1, 4):
        a('v_fmac_f32 v148, v%d, v%d' % (128 + 2 * sp, 129 + 2 * sp)); a('v_fmac_f32 v149, v%d, v%d' % (128 + 2 * sp, 96 + sp))
    a('v_rcp_f32 v148, v148'); a('v_mul_f32 v149, v149, v148'); a('v_cvt_pk_bf16_f32 v149, v149, v149')
    a('v_lshlrev_b32 v150, 1, v%d' % L); a('s_lshl_b32 s%d, s%d, 7' % (S_T0, S_T3)); a('v_add_u32 v150, s%d, v150' % S_T0)
    a('ds_write_b16 v150, v149 offset:%d' % XO)
    a.label(lb_done)
    a.fence()
    a('s_waitcnt lgkmcnt(0)'); a('s_barrier')
    a('v_lshrrev_b32 v96, 3, v%d' % VJ); a('v_lshlrev_b32 v96, 7, v96'); a('v_lshl_add_u32 v96, v%d, 5, v96' % VG)
    a('s_lshl_b32 s%d, s%d, 2' % (S_T0, S_WAVE)); a('v_add_u32 v96, s%d, v96' % S_T0)
    for p in range(2):
        a('ds_read_b32 v%d, v96 offset:%d' % (100 + p, XC + p * 256)); a('ds_read_b32 v%d, v96 offset:%d' % (102 + p, XO + p * 256))
    a('s_waitcnt lgkmcnt(0)')
    a('s_waitcnt vmcnt(16)')
    D1, D2, AT = 104, 112, 120
    for (xr, wr, d) in ((100, WUV, D1), (102, WBO, D2)):
        for i in range(2):
            for p in range(2): diagA(a, AT + 4 * p, xr + p, i)
            for p in range(2): a('v_mfma_f32_16x16x32_bf16 %s, %s, %s, %s' % (V(d + 4 * p), V(AT + 4 * p), V(wr + 4 * i), V(d + 4 * p) if i else '0'))
    VA, VB = 97, 98
    a('v_lshrrev_b32 v%d, 5, v%d' % (VA, L)); a('v_lshlrev_b32 v%d, 9, v%d' % (VA, VA)); a('v_lshl_add_u32 v%d, v%d, 5, v%d' % (VA, VJ, VA))
    a('v_and_b32 v%d, 1, v%d' % (VB, VG)); a('v_lshl_add_u32 v%d, v%d, 4, v%d' % (VA, VB, VA))
    a('s_lshl_b32 s%d, s%d, 11' % (S_T0, S_WAVE)); a('v_add_u32 v%d, s%d, v%d' % (VA, S_T0, VA))
    for p in range(2):
        a('ds_write_b128 v%d, %s offset:%d' % (VA, V(D1 + 4 * p), RED1 + p * 1024))
        a('ds_write_b128 v%d, %s offset:%d' % (VA, V(D2 + 4 * p), RED2 + p * 1024))
    a('s_waitcnt lgkmcnt(0)'); a('s_barrier')
    a('v_lshlrev_b32 v%d, 2, v%d' % (VA, V_TID))
    R = 100
    for k in range(8): a('ds_read_b32 v%d, v%d offset:%d' % (R + k, VA, RED1 + k * 2048))
    for k in range(8): a('ds_read_b32 v%d, v%d offset:%d' % (R + 8 + k, VA, RED2 + k * 2048))
    a('s_waitcnt lgkmcnt(8)')
    for k in range(1, 8): a('v_add_f32 v%d, v%d, v%d' % (R, R, R + k))
    a('v_cvt_pk_bf16_f32 v%d, v%d, v%d' % (R, R, R))
    a('v_lshlrev_b32 v%d, 1, v%d' % (VB, V_TID))
    a('ds_write_b16 v%d, v%d offset:%d' % (VB, R, XD))
    a('s_waitcnt lgkmcnt(1)')
    for k in range(1, 8): a('v_add_f32 v%d, v%d, v%d' % (R + 8, R + 8, R + 8 + k))
    a('s_lshl_b32 s%d, s%d, 2' % (S_T0, S_RG)); a('s_add_u32 s%d, s%d, s%d' % (S_T0, S_T0, S_CG)); a('s_lshl_b32 s%d, s%d, 11' % (S_T0, S_T0)); a('s_add_u32 s%d, s%d, 0x%x' % (S_T0, S_T0, WS_OPB))
    a('buffer_store_dword v%d, v%d, %s, s%d offen' % (R + 8, VA, S(SRD_WS), S_T0))
    a('s_waitcnt lgkmcnt(0)'); a('s_barrier')
    a('v_bfe_u32 v96, v%d, 3, 2' % L); a('v_lshlrev_b32 v96, 8, v96'); a('v_lshrrev_b32 v97, 5, v%d' % L); a('v_lshl_add_u32 v96, v97, 5, v96')
    a('s_lshr_b32 s%d, s%d, 1' % (S_T0, S_WAVE)); a('s_lshl_b32 s%d, s%d, 6' % (S_T1, S_T0)); a('v_add_u32 v96, s%d, v96' % S_T1)
    a('ds_read_b128 v[100:103], v96 offset:%d' % XD); a('ds_read_b128 v[104:107], v96 offset:%d' % (XD + 16))
    a('s_waitcnt lgkmcnt(0)')
    OD = 128
    for t in range(16):
        a.wait_vm(tokO[t]) if False else None
        at = 112 + 4 * (t % 2)
        diagA(a, at, 100 + t // 2, t % 2)
        if t == 0: a('s_waitcnt vmcnt(1)')
        a('v_mfma_f32_32x32x16_bf16 %s, %s, %s, %s' % (V(OD, 16), V(at), V(WO + 4 * t), V(OD, 16) if t else '0'))
    a('v_and_b32 v96, 31, v%d' % L); a('v_lshlrev_b32 v96, 5, v96'); a('v_lshl_add_u32 v96, v97, 4, v96')
    a('s_lshl_b32 s%d, s%d, 13' % (S_T0, S_T0)); a('s_and_b32 s%d, s%d, 1' % (S_T1, S_WAVE)); a('s_lshl_b32 s%d, s%d, 10' % (S_T1, S_T1)); a('s_add_u32 s%d, s%d, s%d' % (S_T0, S_T0, S_T1))
    a('v_add_u32 v96, s%d, v96' % S_T0); a('v_add_u32 v96, 0x%x, v96' % RED3)
    for b in range(4): a('ds_write_b128 v96, %s offset:%d' % (V(OD + 4 * b), b * 2048))
    a('s_waitcnt lgkmcnt(0)'); a('s_barrier')
    a('v_lshlrev_b32 v96, 4, v%d' % V_TID); a('v_add_u32 v97, 0x%x, v96' % RED3)
    for rq in range(4): a('ds_read_b128 %s, v97 offset:%d' % (V(100 + 4 * rq), rq * 8192))
    a('s_waitcnt lgkmcnt(0)')
    for i in range(4):
        a('v_add_f32 v%d, v%d, v%d' % (100 + i, 100 + i, 104 + i)); a('v_add_f32 v%d, v%d, v%d' % (108 + i, 108 + i, 112 + i)); a('v_add_f32 v%d, v%d, v%d' % (100 + i, 100 + i, 108 + i))
    a('s_lshl_b32 s%d, s2, 13' % S_T0); a('s_add_u32 s%d, s%d, 0x%x' % (S_T0, S_T0, WS_OPA))
    a('buffer_store_dwordx4 v[100:103], v96, %s, s%d offen' % (S(SRD_WS), S_T0))
    end_kernel(a)
    return a, 176, 0, 36864 + 32768

def k4():
    a = Asm(); a.kname = 'k4'
    prologue(a, nwg=128)
    L = V_LANE
    srd(a, SRD_A, P_OUT, 8192)
    lb = a.newlabel('finB'); ld = a.newlabel('fin_red')
    S_B, S_CGP = 66, 67
    a('s_bfe_u32 s%d, s2, 0x20004' % S_B); a('s_and_b32 s%d, s2, 15' % S_CGP)
    a('v_lshrrev_b32 v10, 3, v%d' % L); a('v_and_b32 v11, 7, v%d' % L)
    a('s_cmp_ge_u32 s2, 64'); a('s_cbranch_scc1 ' + lb)
    a('v_lshlrev_b32 v12, 13, v10'); a('v_lshl_add_u32 v12, v11, 4, v12')
    a('s_lshl_b32 s%d, s%d, 18' % (S_T0, S_WAVE)); a('s_lshl_b32 s%d, s%d, 11' % (S_T1, S_B)); a('s_add_u32 s%d, s%d, s%d' % (S_T0, S_T0, S_T1)); a('s_lshl_b32 s%d, s%d, 7' % (S_T1, S_CGP)); a('s_add_u32 s%d, s%d, s%d' % (S_T0, S_T0, S_T1)); a('s_add_u32 s%d, s%d, 0x%x' % (S_T0, S_T0, WS_OPA))
    for n in range(4):
        a('s_add_u32 s%d, s%d, %d' % (S_T1, S_T0, n * 65536))
        a('buffer_load_dwordx4 %s, v12, %s, s%d offen' % (V(16 + 4 * n), S(SRD_WS), S_T1))
    a('s_waitcnt vmcnt(0)')
    for i in range(4):
        a('v_add_f32 v%d, v%d, v%d' % (16 + i, 16 + i, 20 + i)); a('v_add_f32 v%d, v%d, v%d' % (24 + i, 24 + i, 28 + i)); a('v_add_f32 v%d, v%d, v%d' % (16 + i, 16 + i, 24 + i))
    a('s_mov_b32 s%d, 0' % S_T5)
    a('s_branch ' + ld)
    a.label(lb)
    a('v_lshlrev_b32 v12, 13, v10'); a('v_lshl_add_u32 v12, v11, 4, v12')
    a('s_lshl_b32 s%d, s%d, 16' % (S_T0, S_WAVE)); a('s_lshr_b32 s%d, s%d, 2' % (S_T1, S_CGP)); a('s_lshl_b32 s%d, s%d, 11' % (S_T1, S_T1)); a('s_add_u32 s%d, s%d, s%d' % (S_T0, S_T0, S_T1))
    a('s_lshl_b32 s%d, s%d, 9' % (S_T1, S_B)); a('s_add_u32 s%d, s%d, s%d' % (S_T0, S_T0, S_T1)); a('s_and_b32 s%d, s%d, 3' % (S_T1, S_CGP)); a('s_lshl_b32 s%d, s%d, 7' % (S_T1, S_T1)); a('s_add_u32 s%d, s%d, s%d' % (S_T0, S_T0, S_T1)); a('s_add_u32 s%d, s%d, 0x%x' % (S_T0, S_T0, WS_OPB))
    a('buffer_load_dwordx4 v[16:19], v12, %s, s%d offen' % (S(SRD_WS), S_T0))
    a('s_waitcnt vmcnt(0)')
    a('s_mov_b32 s%d, 1024' % S_T5)
    a.label(ld)
    a.fence()
    for i in range(4):
        a('v_add_f32_dpp v%d, v%d, v%d row_ror:8 row_mask:0xf bank_mask:0xf' % (20 + i, 16 + i, 16 + i))
    for i in range(4):
        xor16(a, 'v_add_f32', 20 + i, 24 + i); xor32(a, 'v_add_f32', 20 + i, 24 + i)
    a('v_lshlrev_b32 v12, 4, v11'); a('s_lshl_b32 s%d, s%d, 7' % (S_T0, S_WAVE)); a('v_add_u32 v12, s%d, v12' % S_T0)
    a('s_mov_b64 exec, 0xff')
    a('ds_write_b128 v12, v[20:23]')
    a('s_mov_b64 exec, -1')
    a('s_waitcnt lgkmcnt(0)'); a('s_barrier')
    a('s_cmp_lg_u32 s%d, 0' % S_WAVE); a('s_cbranch_scc1 L_end_k4')
    a('s_mov_b32 exec_lo, -1'); a('s_mov_b32 exec_hi, 0')
    a('v_lshlrev_b32 v12, 2, v%d' % L)
    for w in range(8): a('ds_read_b32 v%d, v12 offset:%d' % (16 + w, w * 128))
    a('s_waitcnt lgkmcnt(0)')
    for w in range(1, 8): a('v_add_f32 v16, v16, v%d' % (16 + w))
    a('v_cvt_pk_bf16_f32 v16, v16, v16')
    a('v_lshlrev_b32 v12, 1, v%d' % L)
    a('s_lshl_b32 s%d, s%d, 11' % (S_T0, S_B)); a('s_lshl_b32 s%d, s%d, 6' % (S_T1, S_CGP)); a('s_add_u32 s%d, s%d, s%d' % (S_T0, S_T0, S_T1)); a('s_add_u32 s%d, s%d, s%d' % (S_T0, S_T0, S_T5))
    a('buffer_store_short v16, v12, %s, s%d offen' % (S(SRD_A), S_T0))
    end_kernel(a)
    return a, 32, 0, 1024

def build():
    ks = [('k1_kernel', k1(), 256), ('k2_kernel', k2(), 256), ('k3_kernel', k3(), 256), ('k4_kernel', k4(), 128)]
    hdr = open('concat_heads__compressed_kv_cla__sliding_block_cached__decode.s.ref').read().split('\n')
    hdr = [l for l in hdr if l.startswith(';') and '@launch' not in l and 'Override launch' not in l and 'grid=ceil' not in l]
    hdr = hdr[:16]
    txt = '\n'.join(hdr) + '\n'
    for name, (a, vg, ag, lds), grid in ks:
        txt += '; @launch kernel=%s grid=(%d,1,1) block=(512,1,1) lds=%d\n' % (name, grid, lds)
    txt += '.amdgcn_target "amdgcn-amd-amdhsa--gfx950"\n'
    for name, (a, vg, ag, lds), grid in ks:
        txt += kernel_head(name) + a.render()
    for name, (a, vg, ag, lds), grid in ks:
        txt += kernel_desc(name, vg, ag)
    return txt

if __name__ == '__main__':
    open(sys.argv[1] if len(sys.argv) > 1 else 'v1.s', 'w').write(build())
```

```python
import sys
from asmlib import *

WS_X = 0
WS_QABS = 0x100000
WS_QPB = 0x140000
WS_PA = 0x200000
WS_SA = 0x600000
WS_PB = 0x610000
WS_SB = 0x650000
WS_OPA = 0x700000
WS_OPB = 0x900000
WS_SIZE = 0x10000000
CSCALE = 0.08838834764831845 * 1.4426950408889634
import struct
def f2u(x): return struct.unpack('<I', struct.pack('<f', x))[0]

S_WAVE = 3
P_AX, P_CKV, P_WQ, P_WUK, P_WUV, P_WO, P_BX, P_K, P_V, P_BWQ, P_BWO, P_OUT, P_DBG, P_WS = 4, 6, 8, 10, 12, 14, 16, 18, 20, 22, 24, 26, 28, 30
S_H, S_J, S_XCD, S_T = 32, 33, 34, 35
S_T0, S_T1, S_T2, S_T3, S_T4, S_T5 = 36, 37, 38, 39, 40, 41
SRD_WS = 44
SRD_A = 48
SRD_B = 52
SRD_C = 56
SRD_D = 60
S_EX = 64
V_TID, V_LANE = 0, 1
V_SEL = 2

def srd(a, dst, ptr, size, off=None):
    if off is None:
        a('s_mov_b32 s%d, s%d' % (dst, ptr)); a('s_and_b32 s%d, s%d, 0xffff' % (dst + 1, ptr + 1))
    else:
        a('s_add_u32 s%d, s%d, s%d' % (dst, ptr, off)); a('s_addc_u32 s%d, s%d, 0' % (dst + 1, ptr + 1)); a('s_and_b32 s%d, s%d, 0xffff' % (dst + 1, dst + 1))
    a('s_mov_b32 s%d, 0x%x' % (dst + 2, size)); a('s_mov_b32 s%d, 0x20000' % (dst + 3))

def S(q): return 's[%d:%d]' % (q, q + 3)
def V(b, n=4): return 'v[%d:%d]' % (b, b + n - 1) if n > 1 else 'v%d' % b

def prologue(a, nwg=256):
    a('s_cmp_ge_u32 s2, %d' % nwg)
    a('s_cbranch_scc1 L_end_%s' % a.kname)
    a('s_load_dwordx16 s[4:19], s[0:1], 0')
    a('s_load_dwordx8 s[20:27], s[0:1], 64')
    a('s_load_dwordx4 s[28:31], s[0:1], 96')
    a('v_lshrrev_b32 v1, 6, v0')
    a('s_and_b32 s%d, s2, 7' % S_XCD)
    a('v_readfirstlane_b32 s%d, v1' % S_WAVE)
    a('s_lshr_b32 s%d, s2, 3' % S_T)
    a('v_and_b32 v%d, 63, v0' % V_LANE)
    a('s_and_b32 s%d, s%d, 3' % (S_H, S_T)); a('s_lshl_b32 s%d, s%d, 2' % (S_T0, S_XCD)); a('s_add_u32 s%d, s%d, s%d' % (S_H, S_H, S_T0))
    a('s_lshr_b32 s%d, s%d, 2' % (S_J, S_T))
    a('s_waitcnt lgkmcnt(0)')
    srd(a, SRD_WS, P_WS, WS_SIZE)

def make_sel(a, t0=10, t1=11, t2=12, t3=13):
    a('v_and_b32 v%d, 7, v%d' % (t0, V_LANE))
    a('v_and_b32 v%d, 1, v%d' % (t1, t0))
    a('v_lshrrev_b32 v%d, 1, v%d' % (t0, t0))
    for par in range(2):
        even = 0x0c0c0302 if par else 0x0c0c0100
        odd = 0x03020c0c if par else 0x01000c0c
        a('v_mov_b32 v%d, 0x%x' % (t2, odd))
        a('v_cmp_eq_u32 vcc, 1, v%d' % t1)
        a('v_cndmask_b32 v%d, 0x%x, v%d, vcc' % (t3, even, t2)) if False else None
        a('v_mov_b32 v%d, 0x%x' % (t3, even))
        a('v_cndmask_b32 v%d, v%d, v%d, vcc' % (t3, t3, t2))
        a('v_mov_b32 v%d, 0x0c0c0c0c' % t2)
        for r in range(4):
            a('v_cmp_eq_u32 vcc, %d, v%d' % (r, t0))
            a('v_cndmask_b32 v%d, v%d, v%d, vcc' % (V_SEL + 2 * r + par, t2, t3))

def diagA(a, dst, src, par):
    for r in range(4):
        a('v_perm_b32 v%d, v%d, v%d, v%d' % (dst + r, src, src, V_SEL + 2 * r + par))

def xor16(a, op, v, t):
    a('v_mov_b32 v%d, v%d' % (t, v)); a('v_permlane16_swap_b32 v%d, v%d' % (v, t)); a('%s v%d, v%d, v%d' % (op, v, v, t))
def xor32(a, op, v, t):
    a('v_mov_b32 v%d, v%d' % (t, v)); a('v_permlane32_swap_b32 v%d, v%d' % (v, t)); a('%s v%d, v%d, v%d' % (op, v, v, t))

def end_kernel(a):
    a.label('L_end_%s' % a.kname); a('s_endpgm')

def ph1(a):
    a.pend = a.newlabel('P1end')
    make_sel(a)
    L = V_LANE
    VW, VX, VX2, VUK, VT = 10, 11, 12, 13, 14
    a('v_lshrrev_b32 v%d, 4, v%d' % (VT, L))
    a('v_and_b32 v%d, 15, v%d' % (VUK, L))
    a('v_lshlrev_b32 v%d, 17, v%d' % (VW, VT))
    a('v_lshl_add_u32 v%d, v%d, 4, v%d' % (VW, VUK, VW))
    a('v_lshrrev_b32 v%d, 3, v%d' % (VX, VUK))
    a('v_lshlrev_b32 v%d, 10, v%d' % (VX, VX))
    a('v_lshl_add_u32 v%d, v%d, 5, v%d' % (VX, VT, VX))
    a('v_lshlrev_b32 v%d, 13, v%d' % (VUK, VUK))
    a('v_lshl_add_u32 v%d, v%d, 4, v%d' % (VUK, VT, VUK))
    srd(a, SRD_A, P_WQ, 4 << 20); srd(a, SRD_B, P_BWQ, 4 << 20); srd(a, SRD_C, P_WUK, 4 << 20)
    srd(a, SRD_D, P_AX, 4096)
    XR, XB, WR, WB, WK, AT, D1, D2 = 16, 32, 36, 100, 108, 124, 132, 140
    a('s_lshl_b32 s%d, s%d, 7' % (S_T0, S_WAVE))
    a('s_add_u32 s%d, s%d, 2048' % (S_T1, S_T0))
    a('buffer_load_dwordx4 %s, v%d, %s, s%d offen' % (V(XR), VX, S(SRD_D), S_T0))
    a('buffer_load_dwordx4 %s, v%d, %s, s%d offen offset:16' % (V(XR + 4), VX, S(SRD_D), S_T0))
    a('buffer_load_dwordx4 %s, v%d, %s, s%d offen' % (V(XR + 8), VX, S(SRD_D), S_T1))
    a('buffer_load_dwordx4 %s, v%d, %s, s%d offen offset:16' % (V(XR + 12), VX, S(SRD_D), S_T1))
    srd(a, SRD_D, P_BX, 4096)
    a('s_lshl_b32 s%d, s%d, 7' % (S_T0, S_J)); a('s_lshl_b32 s%d, s%d, 2' % (S_T1, S_WAVE)); a('s_add_u32 s%d, s%d, s%d' % (S_T0, S_T0, S_T1))
    a('s_add_u32 s%d, s%d, 2048' % (S_T1, S_T0))
    a('buffer_load_dword v%d, v%d, %s, s%d offen' % (XB, VX, S(SRD_D), S_T0))
    a('buffer_load_dword v%d, v%d, %s, s%d offen' % (XB + 1, VX, S(SRD_D), S_T1))
    tok_x = a.vm_token()
    a('s_lshl_b32 s%d, s%d, 19' % (S_T0, S_WAVE)); a('s_lshl_b32 s%d, s%d, 8' % (S_T1, S_H)); a('s_add_u32 s%d, s%d, s%d' % (S_T0, S_T0, S_T1))
    tokW = []
    for t in range(16):
        a('s_add_u32 s%d, s%d, %d' % (S_T2, S_T0, t * 8192))
        a('buffer_load_dwordx4 %s, v%d, %s, s%d offen nt' % (V(WR + 4 * t), VW, S(SRD_A), S_T2)); tokW.append(a.vm_token())
    a('s_lshl_b32 s%d, s%d, 19' % (S_T0, S_J)); a('s_add_u32 s%d, s%d, s%d' % (S_T0, S_T0, S_T1))
    a('s_lshl_b32 s%d, s%d, 14' % (S_T2, S_WAVE)); a('s_add_u32 s%d, s%d, s%d' % (S_T0, S_T0, S_T2))
    a('s_add_u32 s%d, s%d, 8192' % (S_T2, S_T0))
    a('buffer_load_dwordx4 %s, v%d, %s, s%d offen nt' % (V(WB), VW, S(SRD_B), S_T0))
    a('buffer_load_dwordx4 %s, v%d, %s, s%d offen nt' % (V(WB + 4), VW, S(SRD_B), S_T2)); tokB = a.vm_token()
    a('s_and_b32 s%d, s%d, 3' % (S_T2, S_WAVE)); a('s_lshl_b32 s%d, s%d, 17' % (S_T2, S_T2))
    a('s_lshl_b32 s%d, s%d, 19' % (S_T0, S_J)); a('s_add_u32 s%d, s%d, s%d' % (S_T0, S_T0, S_T2)); a('s_add_u32 s%d, s%d, s%d' % (S_T0, S_T0, S_T1))
    for s in range(4):
        a('buffer_load_dwordx4 %s, v%d, %s, s%d offen offset:%d nt' % (V(WK + 4 * s), VUK, S(SRD_C), S_T0, s * 64))
    tokK = a.vm_token()
    for i in range(8): a('v_mov_b32 v%d, 0' % (D1 + i)); a('v_mov_b32 v%d, 0' % (D2 + i))
    for t in range(16):
        a.wait_vm(tokW[t])
        for p in range(2): diagA(a, AT + 4 * p, XR + 8 * p + t // 2, t % 2)
        for p in range(2): a('v_mfma_f32_16x16x32_bf16 %s, %s, %s, %s' % (V(D1 + 4 * p), V(AT + 4 * p), V(WR + 4 * t), V(D1 + 4 * p)))
    a.wait_vm(tokB)
    for i in range(2):
        for p in range(2): diagA(a, AT + 4 * p, XB + p, i)
        for p in range(2): a('v_mfma_f32_16x16x32_bf16 %s, %s, %s, %s' % (V(D2 + 4 * p), V(AT + 4 * p), V(WB + 4 * i), V(D2 + 4 * p)))
    VA, VB = 10, 11
    a('v_lshrrev_b32 v%d, 5, v%d' % (VA, L)); a('v_lshlrev_b32 v%d, 9, v%d' % (VA, VA))
    a('v_and_b32 v%d, 15, v%d' % (VB, L)); a('v_lshl_add_u32 v%d, v%d, 5, v%d' % (VA, VB, VA))
    a('v_bfe_u32 v%d, v%d, 4, 1' % (VB, L)); a('v_lshl_add_u32 v%d, v%d, 4, v%d' % (VA, VB, VA))
    a('s_lshl_b32 s%d, s%d, 11' % (S_T0, S_WAVE)); a('v_add_u32 v%d, s%d, v%d' % (VA, S_T0, VA))
    for p in range(2):
        a('ds_write_b128 v%d, %s offset:%d' % (VA, V(D1 + 4 * p), p * 1024))
        a('ds_write_b128 v%d, %s offset:%d' % (VA, V(D2 + 4 * p), 16384 + p * 1024))
    a('s_waitcnt lgkmcnt(0)'); a('s_barrier')
    a('v_lshlrev_b32 v%d, 2, v%d' % (VA, V_TID))
    R = 36
    for k in range(8): a('ds_read_b32 v%d, v%d offset:%d' % (R + k, VA, k * 2048))
    for k in range(8): a('ds_read_b32 v%d, v%d offset:%d' % (R + 8 + k, VA, 16384 + k * 2048))
    a('s_waitcnt lgkmcnt(8)')
    for k in range(1, 8): a('v_add_f32 v%d, v%d, v%d' % (R, R, R + k))
    a('v_cvt_pk_bf16_f32 v%d, v%d, v%d' % (R, R, R))
    a('v_lshlrev_b32 v%d, 1, v%d' % (VB, V_TID))
    a('ds_write_b16 v%d, v%d offset:32768' % (VB, R))
    a('s_waitcnt lgkmcnt(1)')
    for k in range(1, 8): a('v_add_f32 v%d, v%d, v%d' % (R + 8, R + 8, R + 8 + k))
    a('s_lshl_b32 s%d, s%d, 3' % (S_T0, S_H)); a('s_add_u32 s%d, s%d, s%d' % (S_T0, S_T0, S_J)); a('s_lshl_b32 s%d, s%d, 11' % (S_T0, S_T0)); a('s_add_u32 s%d, s%d, 0x%x' % (S_T0, S_T0, WS_QPB))
    a('buffer_store_dword v%d, v%d, %s, s%d offen sc1' % (R + 8, VA, S(SRD_WS), S_T0))
    a('s_waitcnt lgkmcnt(0)'); a('s_barrier')
    a('s_cmp_ge_u32 s%d, 4' % S_WAVE); a('s_cbranch_scc1 ' + a.pend)
    a('v_and_b32 v%d, 3, v%d' % (VA, L)); a('v_lshlrev_b32 v%d, 8, v%d' % (VA, VA)); a('v_lshrrev_b32 v%d, 4, v%d' % (VB, L)); a('v_lshl_add_u32 v%d, v%d, 4, v%d' % (VA, VB, VA))
    QF = 36
    for s in range(4): a('ds_read_b128 %s, v%d offset:%d' % (V(QF + 4 * s), VA, 32768 + s * 64))
    for i in range(4): a('v_mov_b32 v%d, 0' % (D1 + i))
    a.wait_vm(tokK); a('s_waitcnt lgkmcnt(0)')
    for s in range(4): a('v_mfma_f32_16x16x32_bf16 %s, %s, %s, %s' % (V(D1), V(WK + 4 * s), V(QF + 4 * s), V(D1)))
    a('v_cvt_pk_bf16_f32 v%d, v%d, v%d' % (QF, D1, D1 + 1)); a('v_cvt_pk_bf16_f32 v%d, v%d, v%d' % (QF + 1, D1 + 2, D1 + 3))
    a('v_and_b32 v%d, 15, v%d' % (VA, L)); a('v_cmp_gt_u32 vcc, 4, v%d' % VA)
    a('v_lshlrev_b32 v%d, 15, v%d' % (VA, VA)); a('v_lshl_add_u32 v%d, v%d, 3, v%d' % (VA, VB, VA))
    a('s_lshl_b32 s%d, s%d, 10' % (S_T0, S_H)); a('s_lshl_b32 s%d, s%d, 7' % (S_T1, S_J)); a('s_add_u32 s%d, s%d, s%d' % (S_T0, S_T0, S_T1))
    a('s_lshl_b32 s%d, s%d, 5' % (S_T1, S_WAVE)); a('s_add_u32 s%d, s%d, s%d' % (S_T0, S_T0, S_T1)); a('s_add_u32 s%d, s%d, 0x%x' % (S_T0, S_T0, WS_QABS))
    a('s_and_saveexec_b64 s[%d:%d], vcc' % (S_EX, S_EX + 1))
    a('buffer_store_dwordx2 %s, v%d, %s, s%d offen sc1' % (V(QF, 2), VA, S(SRD_WS), S_T0))
    a.label(a.pend); a.fence(); a('s_mov_b64 exec, -1')

def fswz(k): return ((k & 3) << 2) | ((k >> 2) & 3)

def attn_A(a):
    L = V_LANE
    S_B, S_S = 66, 67
    QA = 131072
    a('s_lshr_b32 s%d, s%d, 1' % (S_B, S_XCD))
    a('s_and_b32 s%d, s%d, 1' % (S_S, S_XCD)); a('s_lshl_b32 s%d, s%d, 4' % (S_S, S_S)); a('s_add_u32 s%d, s%d, s%d' % (S_S, S_S, S_T))
    a('s_lshl_b32 s%d, s%d, 22' % (S_T0, S_B)); a('s_lshl_b32 s%d, s%d, 17' % (S_T1, S_S)); a('s_add_u32 s%d, s%d, s%d' % (S_T0, S_T0, S_T1))
    srd(a, SRD_A, P_CKV, 131072, S_T0)
    VL16, VT0, VT1 = 10, 11, 12
    a('v_lshlrev_b32 v%d, 4, v%d' % (VL16, L))
    a('s_lshl_b32 s%d, s%d, 14' % (S_T0, S_WAVE))
    for i in range(16):
        vt = VT0 + (i % 2)
        a('v_xor_b32 v%d, %d, v%d' % (vt, fswz(i) * 16, VL16))
        a('s_add_u32 s%d, s%d, %d' % (S_T1, S_T0, i * 1024))
        a('s_mov_b32 m0, s%d' % S_T1)
        a('buffer_load_dwordx4 v%d, %s, s%d offen nt lds' % (vt, S(SRD_A), S_T1))
    a('s_lshl_b32 s%d, s%d, 15' % (S_T0, S_B)); a('s_add_u32 s%d, s%d, 0x%x' % (S_T0, S_T0, WS_QABS))
    a('s_lshl_b32 s%d, s%d, 12' % (S_T2, S_WAVE))
    a('s_add_u32 s%d, s%d, s%d' % (S_T0, S_T0, S_T2))
    a('s_and_b32 s%d, s%d, 3' % (S_T3, S_WAVE)); a('s_lshl_b32 s%d, s%d, 4' % (S_T3, S_T3))
    for i in range(4):
        vt = VT0 + (i % 2)
        a('s_or_b32 s%d, s%d, %d' % (S_T4, S_T3, i << 6))
        a('v_xor_b32 v%d, s%d, v%d' % (vt, S_T4, VL16))
        a('s_add_u32 s%d, s%d, %d' % (S_T1, S_T2, QA + i * 1024)); a('s_mov_b32 m0, s%d' % S_T1)
        a('s_add_u32 s%d, s%d, %d' % (S_T1, S_T0, i * 1024))
        a('buffer_load_dwordx4 v%d, %s, s%d offen sc1 lds' % (vt, S(SRD_WS), S_T1))
    a('s_waitcnt vmcnt(0)'); a('s_barrier')
    lab_w47 = a.newlabel('attnA_idle')
    a('s_cmp_ge_u32 s%d, 4' % S_WAVE); a('s_cbranch_scc1 ' + lab_w47)
    AK, AQ = 16, 24
    VI, VG, VF = 11, 12, 13
    a('v_and_b32 v%d, 31, v%d' % (VI, L)); a('v_lshrrev_b32 v%d, 5, v%d' % (VG, L))
    a('v_and_b32 v%d, 3, v%d' % (VF, VI)); a('v_lshlrev_b32 v%d, 2, v%d' % (VF, VF)); a('v_bfe_u32 v%d, v%d, 2, 2' % (14, VI)); a('v_or_b32 v%d, v%d, v14' % (VF, VF))
    a('v_xor_b32 v%d, v%d, v%d' % (VF, VF, VG)); a('v_lshlrev_b32 v%d, 4, v%d' % (VF, VF))
    a('v_lshl_add_u32 v%d, v%d, 10, v%d' % (VF, VI, VF))
    a('s_lshl_b32 s%d, s%d, 15' % (S_T0, S_WAVE))
    for u in range(8):
        a('v_xor_b32 v%d, %d, v%d' % (AQ + u, u * 32, VF))
        a('v_add_u32 v%d, s%d, v%d' % (AK + u, S_T0, AQ + u))
        a('v_add_u32 v%d, 0x%x, v%d' % (AQ + u, QA, AQ + u))
    SD = 32
    FA, FB = 48, 80
    NPF = 6
    toks = {}
    def rd(s2):
        a('ds_read_b128 %s, v%d offset:%d' % (V(FA + 4 * (s2 % 8)), AK + s2 % 8, (s2 // 8) * 256))
        a('ds_read_b128 %s, v%d offset:%d' % (V(FB + 4 * (s2 % 8)), AQ + s2 % 8, (s2 // 8) * 256))
        toks[s2] = a.lg_token()
    for s2 in range(NPF): rd(s2)
    for s2 in range(32):
        a.wait_lg(toks[s2])
        a('v_mfma_f32_32x32x16_bf16 %s, %s, %s, %s' % (V(SD, 16), V(FA + 4 * (s2 % 8)), V(FB + 4 * (s2 % 8)), V(SD, 16) if s2 else '0'))
        if s2 + NPF < 32: rd(s2 + NPF)
    VM, VT = 112, 113
    a('v_max3_f32 v%d, v%d, v%d, v%d' % (VM, SD, SD + 1, SD + 2))
    for r in range(3, 15, 2): a('v_max3_f32 v%d, v%d, v%d, v%d' % (VM, VM, SD + r, SD + r + 1))
    a('v_max_f32 v%d, v%d, v%d' % (VM, VM, SD + 15))
    xor32(a, 'v_max_f32', VM, VT)
    a.label(lab_w47.replace('idle', 'x'))
    a('s_barrier')
    VE = 114
    a('v_and_b32 v%d, 31, v%d' % (VE, L)); a('v_lshlrev_b32 v%d, 2, v%d' % (VE, VE))
    a('s_lshl_b32 s%d, s%d, 7' % (S_T0, S_WAVE)); a('v_add_u32 v%d, s%d, v%d' % (VT, S_T0, VE)); a('v_add_u32 v%d, 0x%x, v%d' % (VT, QA, VT))
    a('ds_write_b32 v%d, v%d' % (VT, VM))
    a('v_add_u32 v%d, 0x%x, v%d' % (VE, QA, VE))
    a('s_waitcnt lgkmcnt(0)'); a('s_barrier')
    for k in range(4): a('ds_read_b32 v%d, v%d offset:%d' % (116 + k, VE, k * 128))
    a('s_waitcnt lgkmcnt(0)')
    a('v_max3_f32 v%d, v116, v117, v118' % VM); a('v_max_f32 v%d, v%d, v119' % (VM, VM))
    a('s_mov_b32 s%d, 0x%x' % (S_T1, f2u(CSCALE)))
    a('v_mul_f32 v%d, s%d, v%d' % (VM, S_T1, VM))
    for r in range(16):
        a('v_fma_f32 v%d, v%d, s%d, -v%d' % (SD + r, SD + r, S_T1, VM))
    for r in range(16): a('v_exp_f32 v%d, v%d' % (SD + r, SD + r))
    VLs = 115
    a('v_add_f32 v%d, v%d, v%d' % (VLs, SD, SD + 1))
    for r in range(2, 16): a('v_add_f32 v%d, v%d, v%d' % (VLs, VLs, SD + r))
    xor32(a, 'v_add_f32', VLs, 116)
    a('ds_write_b32 v%d, v%d offset:512' % (VT, VLs))
    PF = 48
    for q in range(8): a('v_cvt_pk_bf16_f32 v%d, v%d, v%d' % (PF + q, SD + 2 * q, SD + 2 * q + 1))
    a('s_lshl_b32 s%d, s%d, 11' % (S_T0, S_WAVE)); a('v_add_u32 v%d, s%d, v%d' % (116, S_T0, VL16)); a('v_add_u32 v116, 0x%x, v116' % (QA + 1024))
    a('ds_write_b128 v116, %s' % V(PF)); a('ds_write_b128 v116, %s offset:1024' % V(PF + 4))
    a('s_waitcnt lgkmcnt(0)'); a('s_barrier')
    PFR = 48
    a('v_add_u32 v116, 0x%x, v%d' % (QA + 1024, VL16))
    for kk in range(8): a('ds_read_b128 %s, v116 offset:%d' % (V(PFR + 4 * kk), kk * 1024))
    for k in range(4): a('ds_read_b32 v%d, v%d offset:%d' % (120 + k, VE, 512 + k * 128))
    TB = 16
    vr, vc, vg, vG, vb = 117, 118, 119, 124, 125
    a('v_bfe_u32 v%d, v%d, 2, 2' % (vr, L)); a('v_and_b32 v%d, 3, v%d' % (vc, L)); a('v_lshrrev_b32 v%d, 5, v%d' % (vg, L)); a('v_bfe_u32 v%d, v%d, 4, 1' % (vG, L))
    a('v_lshl_add_u32 v%d, v%d, 2, v%d' % (vb, vg, vr)); a('v_lshlrev_b32 v%d, 10, v%d' % (vb, vb))
    a('v_lshlrev_b32 v%d, 1, v%d' % (vG, vG)); a('v_lshrrev_b32 v126, 1, v%d' % vc); a('v_add_u32 v%d, v%d, v126' % (vG, vG))
    a('v_xor_b32 v%d, v%d, v%d' % (vG, vG, vg)); a('v_lshl_add_u32 v%d, v%d, 2, v%d' % (vG, vr, vG))
    a('v_lshl_add_u32 v%d, v%d, 4, v%d' % (vb, vG, vb))
    a('v_and_b32 v%d, 1, v%d' % (vc, vc)); a('v_lshl_add_u32 v%d, v%d, 3, v%d' % (vb, vc, vb))
    a('s_lshl_b32 s%d, s%d, 8' % (S_T0, S_WAVE)); a('v_add_u32 v%d, s%d, v%d' % (vb, S_T0, vb))
    for cc in range(4):
        for z in range(2):
            a('v_xor_b32 v%d, %d, v%d' % (TB + 2 * cc + z, 64 * cc + 32 * z, vb))
            a('v_add_u32 v%d, 0x10000, v%d' % (TB + 8 + 2 * cc + z, TB + 2 * cc + z))
    ACC = 128
    CF = 192
    seq = [(kk, cc) for kk in range(8) for cc in range(4)]
    toks = {}
    def rdc(n):
        kk, cc = seq[n]
        for z in range(2):
            reg = TB + (8 if kk >= 4 else 0) + 2 * cc + z
            a('ds_read_b64_tr_b16 %s, v%d offset:%d' % (V(CF + 4 * (n % 8) + 2 * z, 2), reg, (kk % 4) * 16384 + z * 8192))
        toks[n] = a.lg_token()
    NPF = 6
    for n in range(NPF): rdc(n)
    for n in range(32):
        kk, cc = seq[n]
        a.wait_lg(toks[n])
        a('v_mfma_f32_32x32x16_bf16 %s, %s, %s, %s' % (V(ACC + 16 * cc, 16), V(PFR + 4 * kk), V(CF + 4 * (n % 8)), V(ACC + 16 * cc, 16) if kk else '0'))
        if n + NPF < 32: rdc(n + NPF)
    a('v_add_f32 v120, v120, v121'); a('v_add_f32 v122, v122, v123'); a('v_add_f32 v121, v120, v122'); a('v_mov_b32 v120, v%d' % VM)
    a('v_and_b32 v117, 31, v%d' % L); a('v_lshlrev_b32 v117, 10, v117')
    a('s_lshl_b32 s%d, s%d, 8' % (S_T0, S_B)); a('s_lshl_b32 s%d, s%d, 3' % (S_T1, S_S)); a('s_add_u32 s%d, s%d, s%d' % (S_T0, S_T0, S_T1)); a('s_add_u32 s%d, s%d, 0x%x' % (S_T0, S_T0, WS_SA))
    sk = a.newlabel('nostat')
    a('s_cmp_lg_u32 s%d, 0' % S_WAVE); a('s_cbranch_scc1 ' + sk)
    a('s_mov_b32 exec_lo, -1'); a('s_mov_b32 exec_hi, 0')
    a('buffer_store_dwordx2 v[120:121], v117, %s, s%d offen sc1' % (S(SRD_WS), S_T0))
    a('s_mov_b64 exec, -1')
    a.label(sk)
    a('v_lshrrev_b32 v117, 5, v%d' % L); a('v_lshlrev_b32 v117, 19, v117'); a('v_and_b32 v118, 31, v%d' % L); a('v_lshl_add_u32 v117, v118, 2, v117')
    a('s_lshl_b32 s%d, s%d, 15' % (S_T0, S_WAVE)); a('s_lshr_b32 s%d, s%d, 1' % (S_T1, S_B)); a('s_lshl_b32 s%d, s%d, 13' % (S_T1, S_T1)); a('s_add_u32 s%d, s%d, s%d' % (S_T0, S_T0, S_T1))
    a('s_lshl_b32 s%d, s%d, 8' % (S_T1, S_S)); a('s_add_u32 s%d, s%d, s%d' % (S_T0, S_T0, S_T1))
    a('s_and_b32 s%d, s%d, 1' % (S_T1, S_B)); a('s_lshl_b32 s%d, s%d, 7' % (S_T1, S_T1)); a('s_add_u32 s%d, s%d, s%d' % (S_T0, S_T0, S_T1)); a('s_add_u32 s%d, s%d, 0x%x' % (S_T0, S_T0, WS_PA))
    n = 0
    for z in range(2):
        for r in range(16):
            vt = 192 + (n % 8); n += 1
            a('v_cvt_pk_bf16_f32 v%d, v%d, v%d' % (vt, ACC + 16 * (2 * z) + r, ACC + 16 * (2 * z + 1) + r))
            hh = 8 * (r // 4) + r % 4
            a('s_add_u32 s%d, s%d, %d' % (S_T1, S_T0, hh * 131072 + z * 16384))
            a('buffer_store_dword v%d, v117, %s, s%d offen sc1' % (vt, S(SRD_WS), S_T1))
    a('s_branch ' + a.pend)
    a.label(lab_w47)
    a('s_barrier'); a('s_barrier'); a('s_barrier')
    a('s_branch ' + a.pend)

def attn_B(a):
    L = V_LANE
    S_B, S_KVH, S_SP, S_U = 66, 67, 68, 69
    a('s_lshl_b32 s%d, s%d, 4' % (S_U, S_XCD)); a('s_add_u32 s%d, s%d, s%d' % (S_U, S_U, S_T)); a('s_sub_u32 s%d, s%d, 16' % (S_U, S_U))
    a('s_lshr_b32 s%d, s%d, 5' % (S_B, S_U)); a('s_bfe_u32 s%d, s%d, 0x30002' % (S_KVH, S_U)); a('s_and_b32 s%d, s%d, 3' % (S_SP, S_U))
    a('s_lshr_b32 s%d, s%d, 2' % (S_T0, S_U)); a('s_lshl_b32 s%d, s%d, 20' % (S_T0, S_T0)); a('s_lshl_b32 s%d, s%d, 16' % (S_T1, S_SP)); a('s_add_u32 s%d, s%d, s%d' % (S_T0, S_T0, S_T1))
    a('s_add_u32 s%d, s%d, %d' % (S_T0, S_T0, 3072 * 256))
    srd(a, SRD_A, P_K, 65536, S_T0); srd(a, SRD_B, P_V, 65536, S_T0)
    VK, VV, VT0, VT1 = 16, 20, 10, 11
    a('v_lshrrev_b32 v%d, 4, v%d' % (VT0, L)); a('v_and_b32 v%d, 15, v%d' % (VT1, L))
    for n4 in range(4):
        a('v_add_u32 v12, %d, v%d' % (4 * n4, VT0)); a('v_xor_b32 v12, v12, v%d' % VT1); a('v_lshlrev_b32 v12, 4, v12'); a('v_lshl_add_u32 v%d, v%d, 8, v12' % (VK + n4, VT0))
    for n2 in range(2):
        a('v_add_u32 v12, %d, v%d' % (4 * n2, VT0)); a('v_lshlrev_b32 v12, 1, v12'); a('v_xor_b32 v12, v12, v%d' % VT1); a('v_lshlrev_b32 v12, 4, v12'); a('v_lshl_add_u32 v%d, v%d, 8, v12' % (VV + n2, VT0))
    a('s_lshl_b32 s%d, s%d, 13' % (S_T0, S_WAVE))
    for n in range(8):
        a('s_add_u32 s%d, s%d, %d' % (S_T1, S_T0, n * 1024)); a('s_mov_b32 m0, s%d' % S_T1)
        a('buffer_load_dwordx4 v%d, %s, s%d offen nt lds' % (VK + n % 4, S(SRD_A), S_T1))
    for n in range(8):
        a('s_add_u32 s%d, s%d, %d' % (S_T1, S_T0, n * 1024)); a('s_add_u32 s%d, s%d, 65536' % (S_T2, S_T1)); a('s_mov_b32 m0, s%d' % S_T2)
        a('buffer_load_dwordx4 v%d, %s, s%d offen nt lds' % (VV + n % 2, S(SRD_B), S_T1))
    QB = 131072
    a('v_lshrrev_b32 v12, 7, v%d' % V_TID); a('v_lshlrev_b32 v12, 14, v12'); a('v_and_b32 v13, 127, v%d' % V_TID); a('v_lshl_add_u32 v12, v13, 2, v12')
    a('s_lshl_b32 s%d, s%d, 16' % (S_T0, S_KVH)); a('s_lshl_b32 s%d, s%d, 9' % (S_T1, S_B)); a('s_add_u32 s%d, s%d, s%d' % (S_T0, S_T0, S_T1)); a('s_add_u32 s%d, s%d, 0x%x' % (S_T0, S_T0, WS_QPB))
    for jj in range(8):
        a('s_add_u32 s%d, s%d, %d' % (S_T1, S_T0, jj * 2048))
        a('buffer_load_dword v%d, v12, %s, s%d offen sc1' % (24 + jj, S(SRD_WS), S_T1))
    a('s_waitcnt vmcnt(0)')
    for jj in range(1, 8): a('v_add_f32 v24, v24, v%d' % (24 + jj))
    a('v_cvt_pk_bf16_f32 v24, v24, v24')
    a('v_lshlrev_b32 v12, 1, v%d' % V_TID); a('v_add_u32 v12, 0x%x, v12' % QB)
    a('ds_write_b16 v12, v24')
    a('s_waitcnt lgkmcnt(0)'); a('s_barrier')
    AK = 16
    a('v_xor_b32 v12, v%d, v%d' % (VT0, VT1)); a('v_lshlrev_b32 v12, 4, v12'); a('v_lshl_add_u32 v12, v%d, 8, v12' % VT1)
    a('s_lshl_b32 s%d, s%d, 13' % (S_T0, S_WAVE)); a('v_add_u32 v12, s%d, v12' % S_T0)
    for s in range(4): a('v_xor_b32 v%d, %d, v12' % (AK + s, 64 * s))
    a('v_and_b32 v13, 3, v%d' % L); a('v_lshlrev_b32 v13, 8, v13'); a('v_lshl_add_u32 v13, v%d, 4, v13' % VT0); a('v_add_u32 v13, 0x%x, v13' % QB)
    QF, KF, SD = 24, 40, 72
    for s in range(4): a('ds_read_b128 %s, v13 offset:%d' % (V(QF + 4 * s), s * 64))
    for T in range(2):
        for s in range(4): a('ds_read_b128 %s, v%d offset:%d' % (V(KF + 16 * T + 4 * s), AK + s, T * 4096))
    a('s_waitcnt lgkmcnt(0)')
    for T in range(2):
        for s in range(4):
            a('v_mfma_f32_16x16x32_bf16 %s, %s, %s, %s' % (V(SD + 4 * T), V(KF + 16 * T + 4 * s), V(QF + 4 * s), V(SD + 4 * T) if s else '0'))
    VM, VT = 80, 81
    a('v_max3_f32 v%d, v%d, v%d, v%d' % (VM, SD, SD + 1, SD + 2)); a('v_max3_f32 v%d, v%d, v%d, v%d' % (VM, VM, SD + 3, SD + 4)); a('v_max3_f32 v%d, v%d, v%d, v%d' % (VM, VM, SD + 5, SD + 6)); a('v_max_f32 v%d, v%d, v%d' % (VM, VM, SD + 7))
    xor16(a, 'v_max_f32', VM, VT); xor32(a, 'v_max_f32', VM, VT)
    MX = QB + 1024
    a('v_and_b32 v82, 3, v%d' % L); a('v_lshlrev_b32 v82, 5, v82'); a('v_add_u32 v82, 0x%x, v82' % MX)
    a('s_lshl_b32 s%d, s%d, 2' % (S_T0, S_WAVE)); a('v_add_u32 v83, s%d, v82' % S_T0)
    a('ds_write_b32 v83, v%d' % VM)
    a('s_waitcnt lgkmcnt(0)'); a('s_barrier')
    a('ds_read_b128 v[84:87], v82'); a('ds_read_b128 v[88:91], v82 offset:16')
    a('s_waitcnt lgkmcnt(0)')
    a('v_max3_f32 v%d, v84, v85, v86' % VM); a('v_max3_f32 v%d, v%d, v87, v88' % (VM, VM)); a('v_max3_f32 v%d, v%d, v89, v90' % (VM, VM)); a('v_max_f32 v%d, v%d, v91' % (VM, VM))
    a('s_mov_b32 s%d, 0x%x' % (S_T1, f2u(CSCALE)))
    a('v_mul_f32 v%d, s%d, v%d' % (VM, S_T1, VM))
    for r in range(8): a('v_fma_f32 v%d, v%d, s%d, -v%d' % (SD + r, SD + r, S_T1, VM))
    for r in range(8): a('v_exp_f32 v%d, v%d' % (SD + r, SD + r))
    a('v_add_f32 v84, v%d, v%d' % (SD, SD + 1))
    for r in range(2, 8): a('v_add_f32 v84, v84, v%d' % (SD + r))
    xor16(a, 'v_add_f32', 84, VT); xor32(a, 'v_add_f32', 84, VT)
    a('ds_write_b32 v83, v84 offset:128')
    for q in range(4): a('v_cvt_pk_bf16_f32 v%d, v%d, v%d' % (84 + q, SD + 2 * q, SD + 2 * q + 1))
    PX = QB + 2048
    a('v_lshlrev_b32 v88, 4, v%d' % L); a('v_add_u32 v88, 0x%x, v88' % PX)
    a('s_lshl_b32 s%d, s%d, 10' % (S_T0, S_WAVE)); a('v_add_u32 v89, s%d, v88' % S_T0)
    a('ds_write_b128 v89, v[84:87]')
    a('s_waitcnt lgkmcnt(0)'); a('s_barrier')
    PFR, VF, OD = 24, 92, 156
    for kk in range(8): a('ds_read_b128 %s, v88 offset:%d' % (V(PFR + 4 * kk), kk * 1024))
    a('ds_read_b128 v[84:87], v82 offset:128'); a('ds_read_b128 v[160:163], v82 offset:144')
    a('v_bfe_u32 v12, v%d, 2, 2' % L)
    a('v_and_b32 v13, 3, v%d' % L)
    a('v_lshl_add_u32 v14, v%d, 2, v12' % VT0)
    a('v_and_b32 v15, 7, v14'); a('v_lshlrev_b32 v15, 1, v15')
    a('v_lshrrev_b32 v16, 1, v13'); a('s_lshl_b32 s%d, s%d, 1' % (S_T0, S_WAVE)); a('v_add_u32 v16, s%d, v16' % S_T0)
    a('v_xor_b32 v16, v16, v15'); a('v_lshlrev_b32 v16, 4, v16'); a('v_lshl_add_u32 v16, v14, 8, v16')
    a('v_and_b32 v13, 1, v13'); a('v_lshl_add_u32 v16, v13, 3, v16'); a('v_add_u32 v16, 0x10000, v16')
    for kk in range(8):
        for z in range(2): a('ds_read_b64_tr_b16 %s, v16 offset:%d' % (V(VF + 4 * kk + 2 * z, 2), kk * 8192 + z * 4096))
    a('s_waitcnt lgkmcnt(0)')
    for kk in range(8):
        a('v_mfma_f32_16x16x32_bf16 %s, %s, %s, %s' % (V(OD), V(VF + 4 * kk), V(PFR + 4 * kk), V(OD) if kk else '0'))
    a('v_add_f32 v84, v84, v85'); a('v_add_f32 v86, v86, v87'); a('v_add_f32 v160, v160, v161'); a('v_add_f32 v162, v162, v163')
    a('v_add_f32 v84, v84, v86'); a('v_add_f32 v160, v160, v162'); a('v_add_f32 v85, v84, v160'); a('v_mov_b32 v84, v%d' % VM)
    a('v_lshlrev_b32 v12, 13, v%d' % VT1); a('v_lshl_add_u32 v12, v%d, 4, v12' % VT0)
    a('s_lshl_b32 s%d, s%d, 15' % (S_T0, S_KVH)); a('s_lshl_b32 s%d, s%d, 11' % (S_T1, S_B)); a('s_add_u32 s%d, s%d, s%d' % (S_T0, S_T0, S_T1))
    a('s_lshl_b32 s%d, s%d, 9' % (S_T1, S_SP)); a('s_add_u32 s%d, s%d, s%d' % (S_T0, S_T0, S_T1)); a('s_lshl_b32 s%d, s%d, 6' % (S_T1, S_WAVE)); a('s_add_u32 s%d, s%d, s%d' % (S_T2, S_T0, S_T1)); a('s_add_u32 s%d, s%d, 0x%x' % (S_T2, S_T2, WS_PB))
    a('v_cmp_gt_u32 vcc, 4, v%d' % VT1); a('s_and_saveexec_b64 s[%d:%d], vcc' % (S_EX, S_EX + 1))
    a('buffer_store_dwordx4 %s, v12, %s, s%d offen sc1' % (V(OD), S(SRD_WS), S_T2))
    sk = a.newlabel('nostatB')
    a('s_cmp_lg_u32 s%d, 0' % S_WAVE); a('s_cbranch_scc1 ' + sk)
    a('s_mov_b64 exec, 0xf')
    a('v_lshlrev_b32 v12, 7, v%d' % L)
    a('s_lshr_b32 s%d, s%d, 6' % (S_T0, S_T0)); a('s_add_u32 s%d, s%d, 0x%x' % (S_T0, S_T0, WS_SB))
    a('buffer_store_dwordx2 v[84:85], v12, %s, s%d offen sc1' % (S(SRD_WS), S_T0))
    a.label(sk)
    a('s_branch ' + a.pend)

def ph2(a):
    a.pend = a.newlabel('P2end')
    lb = a.newlabel('roleB')
    a('s_cmp_ge_u32 s%d, 16' % S_T); a('s_cbranch_scc1 ' + lb)
    attn_A(a)
    a.label(lb)
    a.fence()
    attn_B(a)
    a.label(a.pend); a.fence(); a('s_mov_b64 exec, -1')

def ph3(a):
    a.pend = a.newlabel('P3end')
    make_sel(a)
    L = V_LANE
    XC, XO, RED1, RED2, XD, RED3 = 0, 512, 1024, 1024 + 16384, 1024 + 32768, 36864
    VG, VJ = 10, 11
    a('v_lshrrev_b32 v%d, 4, v%d' % (VG, L)); a('v_and_b32 v%d, 15, v%d' % (VJ, L))
    srd(a, SRD_A, P_WUV, 4 << 20); srd(a, SRD_B, P_BWO, 4 << 20); srd(a, SRD_C, P_WO, 4 << 20)
    WUV, WBO, WO = 16, 24, 32
    a('v_lshlrev_b32 v12, 16, v%d' % VG); a('v_lshl_add_u32 v12, v%d, 4, v12' % VJ)
    a('s_lshl_b32 s%d, s%d, 6' % (S_T0, S_J)); a('s_add_u32 s%d, s%d, s%d' % (S_T0, S_T0, S_WAVE)); a('s_lshl_b32 s%d, s%d, 13' % (S_T0, S_T0))
    a('s_lshl_b32 s%d, s%d, 8' % (S_T1, S_H)); a('s_add_u32 s%d, s%d, s%d' % (S_T0, S_T0, S_T1)); a('s_add_u32 s%d, s%d, %d' % (S_T1, S_T0, 32 * 8192))
    a('buffer_load_dwordx4 %s, v12, %s, s%d offen nt' % (V(WUV), S(SRD_A), S_T0))
    a('buffer_load_dwordx4 %s, v12, %s, s%d offen nt' % (V(WUV + 4), S(SRD_A), S_T1))
    S_RG, S_CG = 66, 67
    a('s_lshr_b32 s%d, s%d, 2' % (S_T0, S_J)); a('s_lshl_b32 s%d, s%d, 1' % (S_RG, S_H)); a('s_add_u32 s%d, s%d, s%d' % (S_RG, S_RG, S_T0)); a('s_and_b32 s%d, s%d, 3' % (S_CG, S_J))
    a('v_lshlrev_b32 v13, 14, v%d' % VG); a('v_lshl_add_u32 v13, v%d, 4, v13' % VJ)
    a('s_lshl_b32 s%d, s%d, 6' % (S_T0, S_RG)); a('s_lshl_b32 s%d, s%d, 1' % (S_T1, S_WAVE)); a('s_add_u32 s%d, s%d, s%d' % (S_T0, S_T0, S_T1)); a('s_lshl_b32 s%d, s%d, 10' % (S_T0, S_T0))
    a('s_lshl_b32 s%d, s%d, 8' % (S_T1, S_CG)); a('s_add_u32 s%d, s%d, s%d' % (S_T0, S_T0, S_T1))
    a('buffer_load_dwordx4 %s, v13, %s, s%d offen nt' % (V(WBO), S(SRD_B), S_T0))
    a('buffer_load_dwordx4 %s, v13, %s, s%d offen offset:1024 nt' % (V(WBO + 4), S(SRD_B), S_T0))
    tok_small = a.vm_token()
    a('v_lshrrev_b32 v14, 5, v%d' % L); a('v_lshlrev_b32 v14, 14, v14'); a('v_and_b32 v15, 31, v%d' % L); a('v_lshl_add_u32 v14, v15, 4, v14')
    a('s_lshl_b32 s%d, s%d, 7' % (S_T0, S_H)); a('s_lshr_b32 s%d, s%d, 1' % (S_T1, S_WAVE)); a('s_lshl_b32 s%d, s%d, 5' % (S_T1, S_T1)); a('s_add_u32 s%d, s%d, s%d' % (S_T0, S_T0, S_T1)); a('s_lshl_b32 s%d, s%d, 10' % (S_T0, S_T0))
    a('s_and_b32 s%d, s%d, 1' % (S_T1, S_WAVE)); a('s_lshl_b32 s%d, s%d, 9' % (S_T1, S_T1)); a('s_add_u32 s%d, s%d, s%d' % (S_T0, S_T0, S_T1))
    tokO = []
    for t in range(16):
        a('s_add_u32 s%d, s%d, %d' % (S_T1, S_T0, t * 1024))
        a('buffer_load_dwordx4 %s, v14, %s, s%d offen' % (V(WO + 4 * t), S(SRD_C), S_T1)); tokO.append(a.vm_token())
    lb_b, lb_done = a.newlabel('combB'), a.newlabel('combdone')
    a('s_cmp_ge_u32 s%d, 2' % S_WAVE); a('s_cbranch_scc1 ' + lb_b)
    PD, ST = 96, 128
    a('v_lshlrev_b32 v100, 11, v%d' % VG); a('v_lshl_add_u32 v144, v%d, 4, v100' % VJ)
    a('s_lshl_b32 s%d, s%d, 3' % (S_T0, S_H)); a('s_add_u32 s%d, s%d, s%d' % (S_T0, S_T0, S_J)); a('s_lshl_b32 s%d, s%d, 1' % (S_T0, S_T0)); a('s_add_u32 s%d, s%d, s%d' % (S_T0, S_T0, S_WAVE))
    a('s_lshl_b32 s%d, s%d, 13' % (S_T0, S_T0)); a('s_add_u32 s%d, s%d, 0x%x' % (S_T0, S_T0, WS_PA))
    a('v_lshrrev_b32 v145, 3, v%d' % VJ); a('v_lshlrev_b32 v145, 8, v145'); a('v_lshl_add_u32 v145, v%d, 6, v145' % VG)
    a('s_lshl_b32 s%d, s%d, 10' % (S_T1, S_H)); a('s_lshl_b32 s%d, s%d, 9' % (S_T2, S_WAVE)); a('s_add_u32 s%d, s%d, s%d' % (S_T1, S_T1, S_T2)); a('s_add_u32 s%d, s%d, 0x%x' % (S_T1, S_T1, WS_SA))
    for k in range(4): a('buffer_load_dwordx4 %s, v145, %s, s%d offen offset:%d sc1' % (V(ST + 4 * k), S(SRD_WS), S_T1, 16 * k))
    tok_st = a.vm_token()
    for t in range(8): a('buffer_load_dwordx4 %s, v144, %s, s%d offen offset:%d sc1' % (V(PD + 4 * t), S(SRD_WS), S_T0, t * 256))
    a.wait_vm(tok_st)
    m = lambda t: ST + 2 * t
    l_ = lambda t: ST + 2 * t + 1
    a('v_max3_f32 v146, v%d, v%d, v%d' % (m(0), m(1), m(2))); a('v_max3_f32 v146, v146, v%d, v%d' % (m(3), m(4))); a('v_max3_f32 v146, v146, v%d, v%d' % (m(5), m(6))); a('v_max_f32 v146, v146, v%d' % m(7))
    xor16(a, 'v_max_f32', 146, 147); xor32(a, 'v_max_f32', 146, 147)
    for t in range(8): a('v_sub_f32 v%d, v%d, v146' % (m(t), m(t)))
    for t in range(8): a('v_exp_f32 v%d, v%d' % (m(t), m(t)))
    a('v_mul_f32 v148, v%d, v%d' % (m(0), l_(0)))
    for t in range(1, 8): a('v_fmac_f32 v148, v%d, v%d' % (m(t), l_(t)))
    xor16(a, 'v_add_f32', 148, 147); xor32(a, 'v_add_f32', 148, 147)
    a('v_rcp_f32 v148, v148')
    for t in range(8): a('v_mul_f32 v%d, v%d, v148' % (m(t), m(t)))
    for q in range(4): a('v_cvt_pk_bf16_f32 v%d, v%d, v%d' % (148 + q, m(2 * q), m(2 * q + 1)))
    a('s_waitcnt vmcnt(0)')
    for t in range(8):
        diagA(a, 152 + 4 * (t % 2), 148 + t // 2, t % 2)
        a('v_mfma_f32_16x16x32_bf16 v[160:163], %s, %s, %s' % (V(152 + 4 * (t % 2)), V(PD + 4 * t), 'v[160:163]' if t else '0'))
    a('v_cvt_pk_bf16_f32 v164, v160, v161'); a('v_cvt_pk_bf16_f32 v165, v162, v163')
    a('v_lshrrev_b32 v166, 5, v%d' % L); a('v_lshrrev_b32 v167, 3, v%d' % VJ); a('v_cmp_eq_u32 vcc, v166, v167')
    a('v_and_b32 v166, 1, v%d' % VG); a('v_lshlrev_b32 v166, 3, v166'); a('v_lshl_add_u32 v166, v%d, 4, v166' % VJ)
    a('s_lshl_b32 s%d, s%d, 8' % (S_T0, S_WAVE)); a('v_add_u32 v166, s%d, v166' % S_T0)
    a('s_and_saveexec_b64 s[%d:%d], vcc' % (S_EX, S_EX + 1))
    a('ds_write_b64 v166, v[164:165] offset:%d' % XC)
    a('s_mov_b64 exec, s[%d:%d]' % (S_EX, S_EX + 1))
    a('s_branch ' + lb_done)
    a.label(lb_b)
    a.fence()
    a('s_cmp_ge_u32 s%d, 6' % S_WAVE); a('s_cbranch_scc1 ' + lb_done)
    a('s_sub_u32 s%d, s%d, 2' % (S_T3, S_WAVE))
    a('s_lshl_b32 s%d, s%d, 2' % (S_T0, S_H)); a('s_add_u32 s%d, s%d, s%d' % (S_T0, S_T0, S_T3))
    a('s_lshl_b32 s%d, s%d, 5' % (S_T1, S_T0)); a('s_add_u32 s%d, s%d, 0x%x' % (S_T1, S_T1, WS_SB))
    a('s_lshl_b32 s%d, s%d, 11' % (S_T0, S_T0)); a('s_lshr_b32 s%d, s%d, 2' % (S_T2, S_J)); a('s_lshl_b32 s%d, s%d, 8' % (S_T2, S_T2)); a('s_add_u32 s%d, s%d, s%d' % (S_T0, S_T0, S_T2)); a('s_add_u32 s%d, s%d, 0x%x' % (S_T0, S_T0, WS_PB))
    a('v_lshlrev_b32 v144, 2, v%d' % L); a('v_mov_b32 v145, 0')
    a('buffer_load_dwordx4 v[128:131], v145, %s, s%d offen sc1' % (S(SRD_WS), S_T1))
    a('buffer_load_dwordx4 v[132:135], v145, %s, s%d offen offset:16 sc1' % (S(SRD_WS), S_T1))
    for sp in range(4): a('buffer_load_dword v%d, v144, %s, s%d offen offset:%d sc1' % (96 + sp, S(SRD_WS), S_T0, sp * 512))
    a('s_waitcnt vmcnt(0)')
    a('v_max3_f32 v146, v128, v130, v132'); a('v_max_f32 v146, v146, v134')
    for sp in range(4): a('v_sub_f32 v%d, v%d, v146' % (128 + 2 * sp, 128 + 2 * sp))
    for sp in range(4): a('v_exp_f32 v%d, v%d' % (128 + 2 * sp, 128 + 2 * sp))
    a('v_mul_f32 v148, v128, v129'); a('v_mul_f32 v149, v128, v96')
    for sp in range(1, 4):
        a('v_fmac_f32 v148, v%d, v%d' % (128 + 2 * sp, 129 + 2 * sp)); a('v_fmac_f32 v149, v%d, v%d' % (128 + 2 * sp, 96 + sp))
    a('v_rcp_f32 v148, v148'); a('v_mul_f32 v149, v149, v148'); a('v_cvt_pk_bf16_f32 v149, v149, v149')
    a('v_lshlrev_b32 v150, 1, v%d' % L); a('s_lshl_b32 s%d, s%d, 7' % (S_T0, S_T3)); a('v_add_u32 v150, s%d, v150' % S_T0)
    a('ds_write_b16 v150, v149 offset:%d' % XO)
    a.label(lb_done)
    a.fence()
    a('s_waitcnt lgkmcnt(0)'); a('s_barrier')
    a('v_lshrrev_b32 v96, 3, v%d' % VJ); a('v_lshlrev_b32 v96, 7, v96'); a('v_lshl_add_u32 v96, v%d, 5, v96' % VG)
    a('s_lshl_b32 s%d, s%d, 2' % (S_T0, S_WAVE)); a('v_add_u32 v96, s%d, v96' % S_T0)
    for p in range(2):
        a('ds_read_b32 v%d, v96 offset:%d' % (100 + p, XC + p * 256)); a('ds_read_b32 v%d, v96 offset:%d' % (102 + p, XO + p * 256))
    a('s_waitcnt lgkmcnt(0)')
    a('s_waitcnt vmcnt(16)')
    D1, D2, AT = 104, 112, 120
    for (xr, wr, d) in ((100, WUV, D1), (102, WBO, D2)):
        for i in range(2):
            for p in range(2): diagA(a, AT + 4 * p, xr + p, i)
            for p in range(2): a('v_mfma_f32_16x16x32_bf16 %s, %s, %s, %s' % (V(d + 4 * p), V(AT + 4 * p), V(wr + 4 * i), V(d + 4 * p) if i else '0'))
    VA, VB = 97, 98
    a('v_lshrrev_b32 v%d, 5, v%d' % (VA, L)); a('v_lshlrev_b32 v%d, 9, v%d' % (VA, VA)); a('v_lshl_add_u32 v%d, v%d, 5, v%d' % (VA, VJ, VA))
    a('v_and_b32 v%d, 1, v%d' % (VB, VG)); a('v_lshl_add_u32 v%d, v%d, 4, v%d' % (VA, VB, VA))
    a('s_lshl_b32 s%d, s%d, 11' % (S_T0, S_WAVE)); a('v_add_u32 v%d, s%d, v%d' % (VA, S_T0, VA))
    for p in range(2):
        a('ds_write_b128 v%d, %s offset:%d' % (VA, V(D1 + 4 * p), RED1 + p * 1024))
        a('ds_write_b128 v%d, %s offset:%d' % (VA, V(D2 + 4 * p), RED2 + p * 1024))
    a('s_waitcnt lgkmcnt(0)'); a('s_barrier')
    a('v_lshlrev_b32 v%d, 2, v%d' % (VA, V_TID))
    R = 100
    for k in range(8): a('ds_read_b32 v%d, v%d offset:%d' % (R + k, VA, RED1 + k * 2048))
    for k in range(8): a('ds_read_b32 v%d, v%d offset:%d' % (R + 8 + k, VA, RED2 + k * 2048))
    a('s_waitcnt lgkmcnt(8)')
    for k in range(1, 8): a('v_add_f32 v%d, v%d, v%d' % (R, R, R + k))
    a('v_cvt_pk_bf16_f32 v%d, v%d, v%d' % (R, R, R))
    a('v_lshlrev_b32 v%d, 1, v%d' % (VB, V_TID))
    a('ds_write_b16 v%d, v%d offset:%d' % (VB, R, XD))
    a('s_waitcnt lgkmcnt(1)')
    for k in range(1, 8): a('v_add_f32 v%d, v%d, v%d' % (R + 8, R + 8, R + 8 + k))
    a('s_lshl_b32 s%d, s%d, 2' % (S_T0, S_RG)); a('s_add_u32 s%d, s%d, s%d' % (S_T0, S_T0, S_CG)); a('s_lshl_b32 s%d, s%d, 11' % (S_T0, S_T0)); a('s_add_u32 s%d, s%d, 0x%x' % (S_T0, S_T0, WS_OPB))
    a('buffer_store_dword v%d, v%d, %s, s%d offen sc1' % (R + 8, VA, S(SRD_WS), S_T0))
    a('s_waitcnt lgkmcnt(0)'); a('s_barrier')
    a('v_bfe_u32 v96, v%d, 3, 2' % L); a('v_lshlrev_b32 v96, 8, v96'); a('v_lshrrev_b32 v97, 5, v%d' % L); a('v_lshl_add_u32 v96, v97, 5, v96')
    a('s_lshr_b32 s%d, s%d, 1' % (S_T0, S_WAVE)); a('s_lshl_b32 s%d, s%d, 6' % (S_T1, S_T0)); a('v_add_u32 v96, s%d, v96' % S_T1)
    a('ds_read_b128 v[100:103], v96 offset:%d' % XD); a('ds_read_b128 v[104:107], v96 offset:%d' % (XD + 16))
    a('s_waitcnt lgkmcnt(0)')
    OD = 128
    for t in range(16):
        a.wait_vm(tokO[t]) if False else None
        at = 112 + 4 * (t % 2)
        diagA(a, at, 100 + t // 2, t % 2)
        if t == 0: a('s_waitcnt vmcnt(1)')
        a('v_mfma_f32_32x32x16_bf16 %s, %s, %s, %s' % (V(OD, 16), V(at), V(WO + 4 * t), V(OD, 16) if t else '0'))
    a('v_and_b32 v96, 31, v%d' % L); a('v_lshlrev_b32 v96, 5, v96'); a('v_lshl_add_u32 v96, v97, 4, v96')
    a('s_lshl_b32 s%d, s%d, 13' % (S_T0, S_T0)); a('s_and_b32 s%d, s%d, 1' % (S_T1, S_WAVE)); a('s_lshl_b32 s%d, s%d, 10' % (S_T1, S_T1)); a('s_add_u32 s%d, s%d, s%d' % (S_T0, S_T0, S_T1))
    a('v_add_u32 v96, s%d, v96' % S_T0); a('v_add_u32 v96, 0x%x, v96' % RED3)
    for b in range(4): a('ds_write_b128 v96, %s offset:%d' % (V(OD + 4 * b), b * 2048))
    a('s_waitcnt lgkmcnt(0)'); a('s_barrier')
    a('v_lshlrev_b32 v96, 4, v%d' % V_TID); a('v_add_u32 v97, 0x%x, v96' % RED3)
    for rq in range(4): a('ds_read_b128 %s, v97 offset:%d' % (V(100 + 4 * rq), rq * 8192))
    a('s_waitcnt lgkmcnt(0)')
    for i in range(4):
        a('v_add_f32 v%d, v%d, v%d' % (100 + i, 100 + i, 104 + i)); a('v_add_f32 v%d, v%d, v%d' % (108 + i, 108 + i, 112 + i)); a('v_add_f32 v%d, v%d, v%d' % (100 + i, 100 + i, 108 + i))
    a('s_lshl_b32 s%d, s2, 13' % S_T0); a('s_add_u32 s%d, s%d, 0x%x' % (S_T0, S_T0, WS_OPA))
    a('buffer_store_dwordx4 v[100:103], v96, %s, s%d offen sc1' % (S(SRD_WS), S_T0))
    a.label(a.pend); a.fence(); a('s_mov_b64 exec, -1')

def ph4(a):
    a.pend = a.newlabel('P4end')
    a('s_cmp_ge_u32 s2, 128'); a('s_cbranch_scc1 ' + a.pend)
    L = V_LANE
    srd(a, SRD_A, P_OUT, 8192)
    lb = a.newlabel('finB'); ld = a.newlabel('fin_red')
    S_B, S_CGP = 66, 67
    a('s_bfe_u32 s%d, s2, 0x20004' % S_B); a('s_and_b32 s%d, s2, 15' % S_CGP)
    a('v_lshrrev_b32 v10, 3, v%d' % L); a('v_and_b32 v11, 7, v%d' % L)
    a('s_cmp_ge_u32 s2, 64'); a('s_cbranch_scc1 ' + lb)
    a('v_lshlrev_b32 v12, 13, v10'); a('v_lshl_add_u32 v12, v11, 4, v12')
    a('s_lshl_b32 s%d, s%d, 18' % (S_T0, S_WAVE)); a('s_lshl_b32 s%d, s%d, 11' % (S_T1, S_B)); a('s_add_u32 s%d, s%d, s%d' % (S_T0, S_T0, S_T1)); a('s_lshl_b32 s%d, s%d, 7' % (S_T1, S_CGP)); a('s_add_u32 s%d, s%d, s%d' % (S_T0, S_T0, S_T1)); a('s_add_u32 s%d, s%d, 0x%x' % (S_T0, S_T0, WS_OPA))
    for n in range(4):
        a('s_add_u32 s%d, s%d, %d' % (S_T1, S_T0, n * 65536))
        a('buffer_load_dwordx4 %s, v12, %s, s%d offen sc1' % (V(16 + 4 * n), S(SRD_WS), S_T1))
    a('s_waitcnt vmcnt(0)')
    for i in range(4):
        a('v_add_f32 v%d, v%d, v%d' % (16 + i, 16 + i, 20 + i)); a('v_add_f32 v%d, v%d, v%d' % (24 + i, 24 + i, 28 + i)); a('v_add_f32 v%d, v%d, v%d' % (16 + i, 16 + i, 24 + i))
    a('s_mov_b32 s%d, 0' % S_T5)
    a('s_branch ' + ld)
    a.label(lb)
    a('v_lshlrev_b32 v12, 13, v10'); a('v_lshl_add_u32 v12, v11, 4, v12')
    a('s_lshl_b32 s%d, s%d, 16' % (S_T0, S_WAVE)); a('s_lshr_b32 s%d, s%d, 2' % (S_T1, S_CGP)); a('s_lshl_b32 s%d, s%d, 11' % (S_T1, S_T1)); a('s_add_u32 s%d, s%d, s%d' % (S_T0, S_T0, S_T1))
    a('s_lshl_b32 s%d, s%d, 9' % (S_T1, S_B)); a('s_add_u32 s%d, s%d, s%d' % (S_T0, S_T0, S_T1)); a('s_and_b32 s%d, s%d, 3' % (S_T1, S_CGP)); a('s_lshl_b32 s%d, s%d, 7' % (S_T1, S_T1)); a('s_add_u32 s%d, s%d, s%d' % (S_T0, S_T0, S_T1)); a('s_add_u32 s%d, s%d, 0x%x' % (S_T0, S_T0, WS_OPB))
    a('buffer_load_dwordx4 v[16:19], v12, %s, s%d offen sc1' % (S(SRD_WS), S_T0))
    a('s_waitcnt vmcnt(0)')
    a('s_mov_b32 s%d, 1024' % S_T5)
    a.label(ld)
    a.fence()
    for i in range(4):
        a('v_add_f32_dpp v%d, v%d, v%d row_ror:8 row_mask:0xf bank_mask:0xf' % (20 + i, 16 + i, 16 + i))
    for i in range(4):
        xor16(a, 'v_add_f32', 20 + i, 24 + i); xor32(a, 'v_add_f32', 20 + i, 24 + i)
    a('v_lshlrev_b32 v12, 4, v11'); a('s_lshl_b32 s%d, s%d, 7' % (S_T0, S_WAVE)); a('v_add_u32 v12, s%d, v12' % S_T0)
    a('s_mov_b64 exec, 0xff')
    a('ds_write_b128 v12, v[20:23]')
    a('s_mov_b64 exec, -1')
    a('s_waitcnt lgkmcnt(0)'); a('s_barrier')
    a('s_cmp_lg_u32 s%d, 0' % S_WAVE); a('s_cbranch_scc1 ' + a.pend)
    a('s_mov_b32 exec_lo, -1'); a('s_mov_b32 exec_hi, 0')
    a('v_lshlrev_b32 v12, 2, v%d' % L)
    for w in range(8): a('ds_read_b32 v%d, v12 offset:%d' % (16 + w, w * 128))
    a('s_waitcnt lgkmcnt(0)')
    for w in range(1, 8): a('v_add_f32 v16, v16, v%d' % (16 + w))
    a('v_cvt_pk_bf16_f32 v16, v16, v16')
    a('v_lshlrev_b32 v12, 1, v%d' % L)
    a('s_lshl_b32 s%d, s%d, 11' % (S_T0, S_B)); a('s_lshl_b32 s%d, s%d, 6' % (S_T1, S_CGP)); a('s_add_u32 s%d, s%d, s%d' % (S_T0, S_T0, S_T1)); a('s_add_u32 s%d, s%d, s%d' % (S_T0, S_T0, S_T5))
    a('buffer_store_short v16, v12, %s, s%d offen' % (S(SRD_A), S_T0))
    a.label(a.pend); a.fence(); a('s_mov_b64 exec, -1')


WS_FLAGS = 0x10000
S_NONCE = 70
def read_nonce(a):
    a('v_mov_b32 v10, 0')
    a('buffer_load_dword v11, v10, %s, 0 offen sc1' % S(SRD_WS))
    a('s_waitcnt vmcnt(0)')
    a('v_readfirstlane_b32 s%d, v11' % S_NONCE)
    a('s_add_u32 s%d, s%d, 1' % (S_NONCE, S_NONCE))

def gbarrier(a, k):
    a('s_waitcnt vmcnt(0) lgkmcnt(0)'); a('s_barrier')
    sk = a.newlabel('gb_skip'); pl = a.newlabel('gb_poll'); dn = a.newlabel('gb_done')
    a('s_cmp_lg_u32 s%d, 0' % S_WAVE); a('s_cbranch_scc1 ' + sk)
    fb = WS_FLAGS + k * 0x10000
    a('v_mov_b32 v12, s%d' % S_NONCE)
    a('v_lshlrev_b32 v13, 10, v%d' % V_LANE); a('s_lshl_b32 s%d, s2, 2' % S_T0); a('s_add_u32 s%d, s%d, 0x%x' % (S_T0, S_T0, fb))
    a('s_mov_b64 exec, 0xff')
    a('buffer_store_dword v12, v13, %s, s%d offen sc1' % (S(SRD_WS), S_T0))
    a('s_mov_b64 exec, -1')
    a('v_lshlrev_b32 v13, 4, v%d' % V_LANE); a('s_lshl_b32 s%d, s%d, 10' % (S_T0, S_XCD)); a('s_add_u32 s%d, s%d, 0x%x' % (S_T0, S_T0, fb))
    a('s_mov_b32 s%d, 0' % S_T1)
    a.label(pl)
    a('buffer_load_dwordx4 v[16:19], v13, %s, s%d offen sc1' % (S(SRD_WS), S_T0))
    a('s_add_u32 s%d, s%d, 1' % (S_T1, S_T1)); a('s_cmp_ge_u32 s%d, 0x40000' % S_T1); a('s_cbranch_scc1 ' + dn)
    a('s_waitcnt vmcnt(0)')
    a('v_xor_b32 v16, v16, v12'); a('v_xor_b32 v17, v17, v12'); a('v_xor_b32 v18, v18, v12'); a('v_xor_b32 v19, v19, v12')
    a('v_or_b32 v16, v16, v17'); a('v_or_b32 v18, v18, v19'); a('v_or_b32 v16, v16, v18')
    a('v_cmp_ne_u32 vcc, 0, v16')
    a('s_cbranch_vccnz ' + pl)
    a.label(dn)
    a('s_waitcnt vmcnt(0)')
    a.label(sk)
    a.fence()
    a('s_barrier')

def build():
    NAME = 'concat_heads__compressed_kv_cla__sliding_block_cached__decode_kernel'
    a = Asm(); a.kname = 'k'
    prologue(a)
    read_nonce(a)
    ph1(a); gbarrier(a, 0)
    ph2(a); gbarrier(a, 1)
    sk = a.newlabel('noX')
    a('s_cmp_lg_u32 s2, 0'); a('s_cbranch_scc1 ' + sk); a('s_cmp_lg_u32 s%d, 0' % S_WAVE); a('s_cbranch_scc1 ' + sk)
    a('v_mov_b32 v10, 0'); a('v_mov_b32 v11, s%d' % S_NONCE); a('s_mov_b64 exec, 1')
    a('buffer_store_dword v11, v10, %s, 0 offen sc1' % S(SRD_WS)); a('s_mov_b64 exec, -1')
    a.label(sk)
    ph3(a); gbarrier(a, 2)
    ph4(a)
    end_kernel(a)
    hdr = open('concat_heads__compressed_kv_cla__sliding_block_cached__decode.s.ref').read().split('\n')
    hdr = [l for l in hdr if l.startswith(';') and '@launch' not in l and 'Override launch' not in l and 'grid=ceil' not in l][:16]
    txt = '\n'.join(hdr) + '\n; @launch grid=(256,1,1) block=(512,1,1) lds=163840\n.amdgcn_target "amdgcn-amd-amdhsa--gfx950"\n'
    txt += kernel_head(NAME) + a.render() + kernel_desc(NAME, 224, 0)
    return txt

if __name__ == '__main__':
    open(sys.argv[1] if len(sys.argv) > 1 else 'v2.s', 'w').write(build())
```

```python
import sys, struct
from asmlib import *

NAME = 'concat_heads__compressed_kv_cla__sliding_block_cached__decode_kernel'
WS_X = 0
WS_QPA = 0x100000
WS_QPB = 0x140000
WS_QABS = 0x180000
WS_PAG = 0x200000
WS_PBG = 0xA00000
WS_CXP = 0xB00000
WS_OPG = 0xC00000
WS_STAMP = 0x8000000
WS_SIZE = 0x10000000
CSCALE = 0.08838834764831845 * 1.4426950408889634
def f2u(x): return struct.unpack('<I', struct.pack('<f', x))[0]
MAXPOLL = 0x20000

S_WAVE = 3
P_AX, P_CKV, P_WQ, P_WUK, P_WUV, P_WO, P_BX, P_K, P_V, P_BWQ, P_BWO, P_OUT, P_DBG, P_WS = 4, 6, 8, 10, 12, 14, 16, 18, 20, 22, 24, 26, 28, 30
S_H, S_J, S_XCD, S_T = 32, 33, 34, 35
T0, T1, T2, T3, T4, T5 = 36, 37, 38, 39, 40, 41
S_CNT = 42
SRD_WS, SRD_A, SRD_B, SRD_C, SRD_D = 44, 48, 52, 56, 60
S_EX = 64
S_R0, S_R1, S_R2, S_R3 = 66, 67, 68, 69
S_TAG, S_N, S_RG, S_CG = 70, 71, 72, 73
S_ACC = 74
S_O = 76
S_STAMP = 80
V_TID, V_LANE, V_SEL, V_G, V_JL, V_ONE = 0, 1, 2, 10, 11, 12
W_UV, W_O2, W_BO = 224, 232, 240
SCR = 131072

STAMPS = False

def S(q): return 's[%d:%d]' % (q, q + 3)
def V(b, n=4): return 'v[%d:%d]' % (b, b + n - 1) if n > 1 else 'v%d' % b
def fswz(k): return ((k & 3) << 2) | ((k >> 2) & 3)

class K(Asm):
    def __init__(self):
        super().__init__(); self.nst = 0
    def stamp(self, idx):
        if STAMPS: self('s_memrealtime s[%d:%d]' % (S_STAMP + 2 * idx, S_STAMP + 2 * idx + 1))

def srd(a, dst, ptr, size, off=None):
    if off is None:
        a('s_mov_b32 s%d, s%d' % (dst, ptr)); a('s_and_b32 s%d, s%d, 0xffff' % (dst + 1, ptr + 1))
    else:
        a('s_add_u32 s%d, s%d, s%d' % (dst, ptr, off)); a('s_addc_u32 s%d, s%d, 0' % (dst + 1, ptr + 1)); a('s_and_b32 s%d, s%d, 0xffff' % (dst + 1, dst + 1))
    a('s_mov_b32 s%d, 0x%x' % (dst + 2, size)); a('s_mov_b32 s%d, 0x20000' % (dst + 3))

def diagA(a, dst, src, par):
    for r in range(4):
        a('v_perm_b32 v%d, v%d, v%d, v%d' % (dst + r, src, src, V_SEL + 2 * r + par))
def xor16(a, op, v, t):
    a('v_mov_b32 v%d, v%d' % (t, v)); a('v_permlane16_swap_b32 v%d, v%d' % (v, t)); a('%s v%d, v%d, v%d' % (op, v, v, t))
def xor32(a, op, v, t):
    a('v_mov_b32 v%d, v%d' % (t, v)); a('v_permlane32_swap_b32 v%d, v%d' % (v, t)); a('%s v%d, v%d, v%d' % (op, v, v, t))
def mfma16(a, d, A, B, first=False):
    a('v_mfma_f32_16x16x32_bf16 %s, %s, %s, %s' % (V(d), V(A), V(B), '0' if first else V(d)))

SLEEP1 = 2
SLEEP2 = 2
def poll(a, issue, tags, pre=None):
    lp, dn = a.newlabel('poll'), a.newlabel('polld')
    a('s_mov_b32 s%d, 0' % S_CNT)
    if pre is not None:
        l1, d1 = a.newlabel('pre'), a.newlabel('pred')
        a.label(l1)
        pre[0]()
        a('s_add_u32 s%d, s%d, 1' % (S_CNT, S_CNT))
        a('s_waitcnt vmcnt(0)')
        a('v_cmp_ne_u32 vcc, s%d, v%d' % (S_TAG, pre[1]))
        a('s_cbranch_vccz ' + d1)
        if SLEEP1: a('s_sleep %d' % SLEEP1)
        a('s_cmp_lt_u32 s%d, 0x%x' % (S_CNT, MAXPOLL)); a('s_cbranch_scc1 ' + l1)
        a.label(d1)
    a.label(lp)
    issue()
    a('s_add_u32 s%d, s%d, 1' % (S_CNT, S_CNT))
    a('s_waitcnt vmcnt(0)')
    a('v_cmp_ne_u32 s[%d:%d], s%d, v%d' % (S_ACC, S_ACC + 1, S_TAG, tags[0]))
    for t in tags[1:]:
        a('v_cmp_ne_u32 vcc, s%d, v%d' % (S_TAG, t)); a('s_or_b64 s[%d:%d], s[%d:%d], vcc' % (S_ACC, S_ACC + 1, S_ACC, S_ACC + 1))
    a('s_cmp_eq_u64 s[%d:%d], 0' % (S_ACC, S_ACC + 1)); a('s_cbranch_scc1 ' + dn)
    if SLEEP2: a('s_sleep %d' % SLEEP2)
    a('s_cmp_lt_u32 s%d, 0x%x' % (S_CNT, MAXPOLL)); a('s_cbranch_scc1 ' + lp)
    a.label(dn)

def wave_lt(a, n, lab):
    a('s_cmp_ge_u32 s%d, %d' % (S_WAVE, n)); a('s_cbranch_scc1 ' + lab)

def prologue(a):
    a('s_cmp_ge_u32 s2, 256'); a('s_cbranch_scc1 L_end')
    a.stamp(0)
    a('s_load_dwordx16 s[4:19], s[0:1], 0')
    a('s_load_dwordx8 s[20:27], s[0:1], 64')
    a('s_load_dwordx4 s[28:31], s[0:1], 96')
    a('v_lshrrev_b32 v1, 6, v0')
    a('s_and_b32 s%d, s2, 7' % S_XCD)
    a('v_readfirstlane_b32 s%d, v1' % S_WAVE)
    a('s_lshr_b32 s%d, s2, 3' % S_T)
    a('v_and_b32 v%d, 63, v0' % V_LANE)
    a('s_and_b32 s%d, s%d, 3' % (S_H, S_T)); a('s_lshl_b32 s%d, s%d, 2' % (T0, S_XCD)); a('s_add_u32 s%d, s%d, s%d' % (S_H, S_H, T0))
    a('s_lshr_b32 s%d, s%d, 2' % (S_J, S_T))
    a('s_lshl_b32 s%d, s%d, 1' % (S_RG, S_H)); a('s_lshr_b32 s%d, s%d, 2' % (T0, S_J)); a('s_add_u32 s%d, s%d, s%d' % (S_RG, S_RG, T0)); a('s_and_b32 s%d, s%d, 3' % (S_CG, S_J))
    a('v_lshrrev_b32 v%d, 4, v%d' % (V_G, V_LANE)); a('v_and_b32 v%d, 15, v%d' % (V_JL, V_LANE))
    a('s_waitcnt lgkmcnt(0)')
    a('s_load_dword s%d, s[%d:%d], 0' % (S_N, P_WS, P_WS + 1))
    srd(a, SRD_WS, P_WS, WS_SIZE)

def make_sel(a, t0=16, t1=17, t2=18, t3=19):
    a('v_and_b32 v%d, 7, v%d' % (t0, V_LANE)); a('v_and_b32 v%d, 1, v%d' % (t1, t0)); a('v_lshrrev_b32 v%d, 1, v%d' % (t0, t0))
    for par in range(2):
        even = 0x0c0c0302 if par else 0x0c0c0100
        odd = 0x03020c0c if par else 0x01000c0c
        a('v_mov_b32 v%d, 0x%x' % (t2, odd)); a('v_mov_b32 v%d, 0x%x' % (t3, even))
        a('v_cmp_eq_u32 vcc, 1, v%d' % t1); a('v_cndmask_b32 v%d, v%d, v%d, vcc' % (t3, t3, t2))
        a('v_mov_b32 v%d, 0x0c0c0c0c' % t2)
        for r in range(4):
            a('v_cmp_eq_u32 vcc, %d, v%d' % (r, t0)); a('v_cndmask_b32 v%d, v%d, v%d, vcc' % (V_SEL + 2 * r + par, t2, t3))
    a('v_mov_b32 v%d, 0x3f803f80' % t0)
    diagA(a, V_ONE, t0, 0)

def make_tag(a):
    a('s_waitcnt lgkmcnt(0)')
    a('s_add_u32 s%d, s%d, 1' % (S_N, S_N))
    a('s_and_b32 s%d, s%d, 0x3fff' % (S_TAG, S_N)); a('s_bfe_u32 s%d, s%d, 0xe000e' % (T0, S_N)); a('s_lshl_b32 s%d, s%d, 16' % (T0, T0)); a('s_or_b32 s%d, s%d, s%d' % (S_TAG, S_TAG, T0))

def early_gemv(a, pW, pX, red, wsdst):
    pass

def early_issue(a, pW, pX):
    srd(a, SRD_B, pW, 4 << 20); srd(a, SRD_D, pX, 4096)
    a('v_lshrrev_b32 v16, 3, v%d' % V_JL); a('v_lshlrev_b32 v16, 10, v16'); a('v_lshl_add_u32 v16, v%d, 3, v16' % V_G)
    a('s_and_b32 s%d, s%d, 3' % (T0, S_J)); a('s_lshl_b32 s%d, s%d, 3' % (T0, T0)); a('s_add_u32 s%d, s%d, s%d' % (T0, T0, S_WAVE))
    a('s_lshl_b32 s%d, s%d, 5' % (T1, T0)); a('s_add_u32 s%d, s%d, 2048' % (T2, T1))
    a('buffer_load_dwordx2 v[20:21], v16, %s, s%d offen' % (S(SRD_D), T1))
    a('buffer_load_dwordx2 v[22:23], v16, %s, s%d offen' % (S(SRD_D), T2))
    a('v_lshlrev_b32 v17, 15, v%d' % V_G); a('v_lshl_add_u32 v17, v%d, 4, v17' % V_JL)
    a('s_lshl_b32 s%d, s%d, 17' % (T0, T0)); a('s_lshl_b32 s%d, s%d, 8' % (T1, S_H)); a('s_add_u32 s%d, s%d, s%d' % (T0, T0, T1))
    toks = []
    for t in range(4):
        a('s_add_u32 s%d, s%d, %d' % (T1, T0, t * 8192))
        a('buffer_load_dwordx4 %s, v17, %s, s%d offen nt' % (V(24 + 4 * t), S(SRD_B), T1)); toks.append(a.vm_token())
    return toks

def red_addr(a, v, t):
    a('v_lshrrev_b32 v%d, 5, v%d' % (v, V_LANE)); a('v_lshlrev_b32 v%d, 9, v%d' % (v, v)); a('v_lshl_add_u32 v%d, v%d, 5, v%d' % (v, V_JL, v))
    a('v_and_b32 v%d, 1, v%d' % (t, V_G)); a('v_lshl_add_u32 v%d, v%d, 4, v%d' % (v, t, v))
    a('s_lshl_b32 s%d, s%d, 11' % (T0, S_WAVE)); a('v_add_u32 v%d, s%d, v%d' % (v, T0, v))

def red_publish(a, red, wlo, soff, R=48):
    a('v_subrev_u32 v%d, %d, v%d' % (R + 32, 64 * wlo, V_TID)) if wlo else a('v_mov_b32 v%d, v%d' % (R + 32, V_TID))
    a('v_lshlrev_b32 v%d, 4, v%d' % (R + 32, R + 32))
    a('v_add_u32 v%d, 0x%x, v%d' % (R + 33, red, R + 32))
    for k in range(8): a('ds_read_b128 %s, v%d offset:%d' % (V(R + 4 * k), R + 33, k * 2048))
    a('s_waitcnt lgkmcnt(0)')
    for i in range(4):
        a('v_add_f32 v%d, v%d, v%d' % (R + i, R + i, R + 4 + i)); a('v_add_f32 v%d, v%d, v%d' % (R + 8 + i, R + 8 + i, R + 12 + i))
        a('v_add_f32 v%d, v%d, v%d' % (R + 16 + i, R + 16 + i, R + 20 + i)); a('v_add_f32 v%d, v%d, v%d' % (R + 24 + i, R + 24 + i, R + 28 + i))
    for i in range(4):
        a('v_add_f32 v%d, v%d, v%d' % (R + i, R + i, R + 8 + i)); a('v_add_f32 v%d, v%d, v%d' % (R + 16 + i, R + 16 + i, R + 24 + i))
    for i in range(4): a('v_add_f32 v%d, v%d, v%d' % (R + i, R + i, R + 16 + i))
    a('v_cvt_pk_bf16_f32 v%d, v%d, v%d' % (R + 4, R, R + 1)); a('v_cvt_pk_bf16_f32 v%d, v%d, v%d' % (R + 5, R + 2, R + 3))
    a('v_mov_b32 v%d, s%d' % (R + 6, S_TAG)); a('v_mov_b32 v%d, 0' % (R + 7))
    a('buffer_store_dwordx4 %s, v%d, %s, s%d offen sc1' % (V(R + 4), R + 32, S(SRD_WS), soff))

def early_compute(a, toks, red, wsbase):
    D, AT = 40, 48
    for t in range(4):
        a.wait_vm(toks[t])
        for p in range(2): diagA(a, AT + 4 * p, 20 + 2 * p + t // 2, t % 2)
        for p in range(2): mfma16(a, D + 4 * p, AT + 4 * p, 24 + 4 * t, first=(t == 0))
    red_addr(a, 16, 17)
    a('v_add_u32 v16, 0x%x, v16' % red)
    for p in range(2): a('ds_write_b128 v16, %s offset:%d' % (V(D + 4 * p), p * 1024))
    make_tag(a)
    a('s_barrier')
    sk = a.newlabel('nopub'); wave_lt(a, 2, sk)
    a('s_lshl_b32 s%d, s%d, 2' % (T0, S_H)); a('s_and_b32 s%d, s%d, 3' % (T1, S_J)); a('s_add_u32 s%d, s%d, s%d' % (T0, T0, T1)); a('s_lshl_b32 s%d, s%d, 11' % (T0, T0)); a('s_add_u32 s%d, s%d, 0x%x' % (T0, T0, wsbase))
    red_publish(a, red, 0, T0)
    a.label(sk); a.fence()

def late_issue(a):
    srd(a, SRD_A, P_WUV, 4 << 20); srd(a, SRD_B, P_WO, 4 << 20); srd(a, SRD_C, P_BWO, 4 << 20)
    a('v_lshlrev_b32 v16, 17, v%d' % V_G); a('v_lshl_add_u32 v16, v%d, 4, v16' % V_JL)
    a('v_lshlrev_b32 v17, 14, v%d' % V_G); a('v_lshl_add_u32 v17, v%d, 4, v17' % V_JL)
    a('s_lshl_b32 s%d, s%d, 6' % (T0, S_J)); a('s_lshl_b32 s%d, s%d, 1' % (T1, S_WAVE)); a('s_add_u32 s%d, s%d, s%d' % (T0, T0, T1)); a('s_lshl_b32 s%d, s%d, 13' % (T0, T0))
    a('s_lshl_b32 s%d, s%d, 8' % (T2, S_H)); a('s_add_u32 s%d, s%d, s%d' % (T0, T0, T2)); a('s_add_u32 s%d, s%d, 8192' % (T2, T0))
    a('buffer_load_dwordx4 %s, v16, %s, s%d offen nt' % (V(W_UV), S(SRD_A), T0))
    a('buffer_load_dwordx4 %s, v16, %s, s%d offen nt' % (V(W_UV + 4), S(SRD_A), T2))
    a('s_lshl_b32 s%d, s%d, 6' % (T0, S_RG)); a('s_add_u32 s%d, s%d, s%d' % (T0, T0, T1)); a('s_lshl_b32 s%d, s%d, 10' % (T0, T0)); a('s_lshl_b32 s%d, s%d, 8' % (T2, S_CG)); a('s_add_u32 s%d, s%d, s%d' % (T0, T0, T2))
    a('buffer_load_dwordx4 %s, v17, %s, s%d offen nt' % (V(W_BO), S(SRD_C), T0))
    a('buffer_load_dwordx4 %s, v17, %s, s%d offen offset:1024 nt' % (V(W_BO + 4), S(SRD_C), T0))
    a('buffer_load_dwordx4 %s, v17, %s, s%d offen nt' % (V(W_O2), S(SRD_B), T0))
    a('buffer_load_dwordx4 %s, v17, %s, s%d offen offset:1024 nt' % (V(W_O2 + 4), S(SRD_B), T0))

def role_A(a, done):
    L = V_LANE
    S_B, S_S = S_R0, S_R1
    QA = SCR
    a('s_lshr_b32 s%d, s%d, 1' % (S_B, S_XCD))
    a('s_and_b32 s%d, s%d, 1' % (S_S, S_XCD)); a('s_lshl_b32 s%d, s%d, 4' % (S_S, S_S)); a('s_add_u32 s%d, s%d, s%d' % (S_S, S_S, S_T))
    a('s_lshl_b32 s%d, s%d, 22' % (T0, S_B)); a('s_lshl_b32 s%d, s%d, 17' % (T1, S_S)); a('s_add_u32 s%d, s%d, s%d' % (T0, T0, T1))
    srd(a, SRD_A, P_CKV, 131072, T0)
    VL16 = 18
    toks = early_issue(a, P_BWQ, P_BX)
    make_sel(a, 44, 45, 46, 47)
    early_compute(a, toks, QA, WS_QPB)
    a.stamp(1)
    a('s_barrier')
    a('v_lshlrev_b32 v%d, 4, v%d' % (VL16, L))
    a('s_lshl_b32 s%d, s%d, 14' % (T0, S_WAVE))
    for i in range(16):
        vt = 20 + (i % 2)
        a('v_xor_b32 v%d, %d, v%d' % (vt, fswz(i) * 16, VL16))
        a('s_add_u32 s%d, s%d, %d' % (T1, T0, i * 1024)); a('s_mov_b32 m0, s%d' % T1)
        a('buffer_load_dwordx4 v%d, %s, s%d offen nt lds' % (vt, S(SRD_A), T1))
    QR = 48
    a('v_lshlrev_b32 v%d, 4, v%d' % (VL16, L))
    a('s_lshl_b32 s%d, s%d, 16' % (T0, S_B)); a('s_lshl_b32 s%d, s%d, 13' % (T1, S_WAVE)); a('s_add_u32 s%d, s%d, s%d' % (T0, T0, T1)); a('s_add_u32 s%d, s%d, 0x%x' % (S_O, T0, WS_QABS))
    a('s_add_u32 s%d, s%d, 4096' % (S_O + 1, S_O))
    def issue():
        for n in range(8):
            a('buffer_load_dwordx4 %s, v%d, %s, s%d offen offset:%d sc1' % (V(QR + 4 * n), VL16, S(SRD_WS), S_O + n // 4, (n % 4) * 1024))
    a('v_lshrrev_b32 v20, 1, v%d' % L); a('v_lshlrev_b32 v20, 4, v20'); a('v_and_b32 v21, 1, v%d' % L); a('v_lshlrev_b32 v21, 3, v21')
    a('s_and_b32 s%d, s%d, 3' % (T2, S_WAVE)); a('s_lshl_b32 s%d, s%d, 4' % (T2, T2))
    a('s_lshl_b32 s%d, s%d, 12' % (T3, S_WAVE)); a('s_add_u32 s%d, s%d, 0x%x' % (T3, T3, QA))
    a('v_add_u32 v21, s%d, v21' % T3)
    for k in range(4):
        a('s_or_b32 s%d, s%d, %d' % (T4, T2, k << 6)); a('v_xor_b32 v%d, s%d, v20' % (24 + k, T4)); a('v_add_u32 v%d, v%d, v21' % (24 + k, 24 + k))
    def issue1():
        a('s_mov_b64 exec, 1')
        a('buffer_load_dwordx4 %s, v%d, %s, s%d offen offset:3072 sc1' % (V(QR), VL16, S(SRD_WS), S_O + 1))
    def issue_full():
        a('s_mov_b64 exec, -1'); issue()
    poll(a, issue_full, [QR + 4 * n + 2 for n in range(8)], pre=(issue1, QR + 2))
    a.stamp(2)
    for n in range(8):
        a('ds_write_b64 v%d, %s offset:%d' % (24 + n // 2, V(QR + 4 * n, 2), (n // 2) * 1024 + (n % 2) * 512))
    late_issue(a)
    a('s_waitcnt lgkmcnt(0)'); a('s_barrier')
    idle = a.newlabel('attnA_idle'); join = a.newlabel('attnA_join')
    a('s_cmp_ge_u32 s%d, 4' % S_WAVE); a('s_cbranch_scc1 ' + idle)
    AK, AQ = 16, 24
    VI, VG, VF = 112, 113, 114
    a('v_and_b32 v%d, 31, v%d' % (VI, L)); a('v_lshrrev_b32 v%d, 5, v%d' % (VG, L))
    a('v_and_b32 v%d, 3, v%d' % (VF, VI)); a('v_lshlrev_b32 v%d, 2, v%d' % (VF, VF)); a('v_bfe_u32 v115, v%d, 2, 2' % VI); a('v_or_b32 v%d, v%d, v115' % (VF, VF))
    a('v_xor_b32 v%d, v%d, v%d' % (VF, VF, VG)); a('v_lshlrev_b32 v%d, 4, v%d' % (VF, VF)); a('v_lshl_add_u32 v%d, v%d, 10, v%d' % (VF, VI, VF))
    a('s_lshl_b32 s%d, s%d, 15' % (T0, S_WAVE))
    for u in range(8):
        a('v_xor_b32 v%d, %d, v%d' % (AQ + u, u * 32, VF)); a('v_add_u32 v%d, s%d, v%d' % (AK + u, T0, AQ + u)); a('v_add_u32 v%d, 0x%x, v%d' % (AQ + u, QA, AQ + u))
    SD, FA, FB, NPF = 32, 48, 80, 6
    toks = {}
    def rd(s2):
        a('ds_read_b128 %s, v%d offset:%d' % (V(FA + 4 * (s2 % 8)), AK + s2 % 8, (s2 // 8) * 256))
        a('ds_read_b128 %s, v%d offset:%d' % (V(FB + 4 * (s2 % 8)), AQ + s2 % 8, (s2 // 8) * 256))
        toks[s2] = a.lg_token()
    for s2 in range(NPF): rd(s2)
    for s2 in range(32):
        a.wait_lg(toks[s2])
        a('v_mfma_f32_32x32x16_bf16 %s, %s, %s, %s' % (V(SD, 16), V(FA + 4 * (s2 % 8)), V(FB + 4 * (s2 % 8)), V(SD, 16) if s2 else '0'))
        if s2 + NPF < 32: rd(s2 + NPF)
    VM, VT, VE, VLs = 112, 113, 114, 115
    a('v_max3_f32 v%d, v%d, v%d, v%d' % (VM, SD, SD + 1, SD + 2))
    for r in range(3, 15, 2): a('v_max3_f32 v%d, v%d, v%d, v%d' % (VM, VM, SD + r, SD + r + 1))
    a('v_max_f32 v%d, v%d, v%d' % (VM, VM, SD + 15))
    xor32(a, 'v_max_f32', VM, VT)
    a.stamp(3)
    a('s_barrier')
    a('v_and_b32 v%d, 31, v%d' % (VE, L)); a('v_lshlrev_b32 v%d, 2, v%d' % (VE, VE))
    a('s_lshl_b32 s%d, s%d, 7' % (T0, S_WAVE)); a('v_add_u32 v%d, s%d, v%d' % (VT, T0, VE)); a('v_add_u32 v%d, 0x%x, v%d' % (VT, QA, VT))
    a('ds_write_b32 v%d, v%d' % (VT, VM))
    a('v_add_u32 v%d, 0x%x, v%d' % (VE, QA, VE))
    a('s_waitcnt lgkmcnt(0)'); a('s_barrier')
    for k in range(4): a('ds_read_b32 v%d, v%d offset:%d' % (116 + k, VE, k * 128))
    a('s_waitcnt lgkmcnt(0)')
    a('v_max3_f32 v%d, v116, v117, v118' % VM); a('v_max_f32 v%d, v%d, v119' % (VM, VM))
    a('s_mov_b32 s%d, 0x%x' % (T1, f2u(CSCALE)))
    a('v_mul_f32 v%d, s%d, v%d' % (VM, T1, VM))
    for r in range(16): a('v_fma_f32 v%d, v%d, s%d, -v%d' % (SD + r, SD + r, T1, VM))
    for r in range(16): a('v_exp_f32 v%d, v%d' % (SD + r, SD + r))
    a('v_add_f32 v%d, v%d, v%d' % (VLs, SD, SD + 1))
    for r in range(2, 16): a('v_add_f32 v%d, v%d, v%d' % (VLs, VLs, SD + r))
    xor32(a, 'v_add_f32', VLs, 116)
    a('ds_write_b32 v%d, v%d offset:512' % (VT, VLs))
    PF = 48
    for q in range(8): a('v_cvt_pk_bf16_f32 v%d, v%d, v%d' % (PF + q, SD + 2 * q, SD + 2 * q + 1))
    a('v_lshlrev_b32 v120, 4, v%d' % L)
    a('s_lshl_b32 s%d, s%d, 11' % (T0, S_WAVE)); a('v_add_u32 v116, s%d, v120' % T0); a('v_add_u32 v116, 0x%x, v116' % (QA + 1024))
    a('ds_write_b128 v116, %s' % V(PF)); a('ds_write_b128 v116, %s offset:1024' % V(PF + 4))
    a('s_waitcnt lgkmcnt(0)'); a('s_barrier')
    PFR = 48
    a('v_add_u32 v116, 0x%x, v120' % (QA + 1024))
    for kk in range(8): a('ds_read_b128 %s, v116 offset:%d' % (V(PFR + 4 * kk), kk * 1024))
    for k in range(4): a('ds_read_b32 v%d, v%d offset:%d' % (120 + k, VE, 512 + k * 128))
    TB = 16
    vr, vc, vg, vG, vb = 117, 118, 119, 124, 125
    a('v_bfe_u32 v%d, v%d, 2, 2' % (vr, L)); a('v_and_b32 v%d, 3, v%d' % (vc, L)); a('v_lshrrev_b32 v%d, 5, v%d' % (vg, L)); a('v_bfe_u32 v%d, v%d, 4, 1' % (vG, L))
    a('v_lshl_add_u32 v%d, v%d, 2, v%d' % (vb, vg, vr)); a('v_lshlrev_b32 v%d, 10, v%d' % (vb, vb))
    a('v_lshlrev_b32 v%d, 1, v%d' % (vG, vG)); a('v_lshrrev_b32 v126, 1, v%d' % vc); a('v_add_u32 v%d, v%d, v126' % (vG, vG))
    a('v_xor_b32 v%d, v%d, v%d' % (vG, vG, vg)); a('v_lshl_add_u32 v%d, v%d, 2, v%d' % (vG, vr, vG))
    a('v_lshl_add_u32 v%d, v%d, 4, v%d' % (vb, vG, vb))
    a('v_and_b32 v%d, 1, v%d' % (vc, vc)); a('v_lshl_add_u32 v%d, v%d, 3, v%d' % (vb, vc, vb))
    a('s_lshl_b32 s%d, s%d, 8' % (T0, S_WAVE)); a('v_add_u32 v%d, s%d, v%d' % (vb, T0, vb))
    for cc in range(4):
        for z in range(2):
            a('v_xor_b32 v%d, %d, v%d' % (TB + 2 * cc + z, 64 * cc + 32 * z, vb)); a('v_add_u32 v%d, 0x10000, v%d' % (TB + 8 + 2 * cc + z, TB + 2 * cc + z))
    ACC, CF = 128, 192
    seq = [(kk, cc) for kk in range(8) for cc in range(4)]
    toks = {}
    def rdc(n):
        kk, cc = seq[n]
        for z in range(2):
            reg = TB + (8 if kk >= 4 else 0) + 2 * cc + z
            a('ds_read_b64_tr_b16 %s, v%d offset:%d' % (V(CF + 4 * (n % 8) + 2 * z, 2), reg, (kk % 4) * 16384 + z * 8192))
        toks[n] = a.lg_token()
    for n in range(NPF): rdc(n)
    for n in range(32):
        kk, cc = seq[n]
        a.wait_lg(toks[n])
        a('v_mfma_f32_32x32x16_bf16 %s, %s, %s, %s' % (V(ACC + 16 * cc, 16), V(CF + 4 * (n % 8)), V(PFR + 4 * kk), V(ACC + 16 * cc, 16) if kk else '0'))
        if n + NPF < 32: rdc(n + NPF)
    a('v_add_f32 v120, v120, v121'); a('v_add_f32 v122, v122, v123'); a('v_add_f32 v121, v120, v122'); a('v_mov_b32 v120, v%d' % VM)
    a.stamp(4)
    a('s_barrier')
    RS = 1032
    a('v_and_b32 v117, 31, v%d' % L); a('v_mul_u32_u24 v117, %d, v117' % RS); a('v_lshrrev_b32 v118, 5, v%d' % L)
    a('v_lshl_add_u32 v119, v118, 3, v117'); a('s_lshl_b32 s%d, s%d, 8' % (T0, S_WAVE)); a('v_add_u32 v119, s%d, v119' % T0)
    n = 0
    for cc in range(4):
        for q4 in range(4):
            vt = 192 + 2 * (n % 8); n += 1
            a('v_cvt_pk_bf16_f32 v%d, v%d, v%d' % (vt, ACC + 16 * cc + 4 * q4, ACC + 16 * cc + 4 * q4 + 1))
            a('v_cvt_pk_bf16_f32 v%d, v%d, v%d' % (vt + 1, ACC + 16 * cc + 4 * q4 + 2, ACC + 16 * cc + 4 * q4 + 3))
            a('ds_write_b64 v119, %s offset:%d' % (V(vt, 2), cc * 64 + q4 * 16))
    sk = a.newlabel('nostat')
    a('s_cmp_lg_u32 s%d, 0' % S_WAVE); a('s_cbranch_scc1 ' + sk)
    a('ds_write_b64 v117, v[120:121] offset:1024')
    a.label(sk)
    a('s_branch ' + join)
    a.label(idle); a.fence()
    a('s_barrier'); a('s_barrier'); a('s_barrier'); a('s_barrier')
    a.label(join); a.fence()
    a('s_waitcnt lgkmcnt(0)'); a('s_barrier')
    a('v_mul_u32_u24 v16, 12, v%d' % V_JL); a('v_lshl_add_u32 v16, v%d, 7, v16' % V_G)
    a('v_add_u32 v17, 512, v16')
    a('v_mov_b32 v18, 1024'); a('v_cmp_eq_u32 vcc, 11, v%d' % V_JL)
    a('v_cndmask_b32 v16, v16, v18, vcc'); a('v_cndmask_b32 v17, v17, v18, vcc')
    a('s_mul_i32 s%d, s%d, %d' % (T0, S_WAVE, 4 * RS)); a('v_add_u32 v16, s%d, v16' % T0); a('v_add_u32 v17, s%d, v17' % T0)
    a('v_cmp_le_u32 s[%d:%d], 10, v%d' % (S_ACC, S_ACC + 1, V_JL))
    a('v_lshlrev_b32 v19, 15, v%d' % V_G); a('v_lshl_add_u32 v19, v%d, 4, v19' % V_JL)
    a('s_lshl_b32 s%d, s%d, 20' % (T0, S_WAVE)); a('s_lshl_b32 s%d, s%d, 5' % (T1, S_B)); a('s_add_u32 s%d, s%d, s%d' % (T1, T1, S_S)); a('s_lshl_b32 s%d, s%d, 8' % (T1, T1))
    a('s_add_u32 s%d, s%d, s%d' % (T0, T0, T1)); a('s_add_u32 s%d, s%d, 0x%x' % (T0, T0, WS_PAG))
    PR = 32
    a('v_cmp_gt_u32 vcc, 12, v%d' % V_JL); a('s_and_saveexec_b64 s[%d:%d], vcc' % (S_EX, S_EX + 1))
    for n in range(8):
        ad = 16 + (n % 2); off = (n // 2) * RS
        a('ds_read2_b32 %s, v%d offset0:%d offset1:%d' % (V(PR + 4 * n, 2), ad, 0, 1)) if off == 0 else None
        if off:
            a('v_add_u32 v%d, %d, v%d' % (20 + n % 2, off, ad)); a('ds_read2_b32 %s, v%d offset0:0 offset1:1' % (V(PR + 4 * n, 2), 20 + n % 2))
        a('ds_read_b32 v%d, v%d offset:%d' % (PR + 4 * n + 2, ad, off + 8))
    a('s_waitcnt lgkmcnt(0)')
    a('v_mov_b32 v18, 0')
    for n in range(8):
        a('v_cndmask_b32 v%d, v%d, v18, s[%d:%d]' % (PR + 4 * n + 2, PR + 4 * n + 2, S_ACC, S_ACC + 1))
        a('v_mov_b32 v%d, s%d' % (PR + 4 * n + 3, S_TAG))
        a('s_add_u32 s%d, s%d, %d' % (T1, T0, ((n // 2) * 8 + 4 * (n % 2)) * 32768))
        a('buffer_store_dwordx4 %s, v19, %s, s%d offen sc1' % (V(PR + 4 * n), S(SRD_WS), T1))
    a('s_mov_b64 exec, s[%d:%d]' % (S_EX, S_EX + 1))
    a.stamp(5)
    a('s_branch ' + done)

def role_B(a, done):
    L = V_LANE
    S_B, S_KVH, S_SP, S_U = S_R0, S_R1, S_R2, S_R3
    RED, QB16 = SCR, SCR + 16384
    toks = early_issue(a, P_WQ, P_AX)
    srd(a, SRD_C, P_WUK, 4 << 20)
    WK = 96
    a('v_lshlrev_b32 v18, 13, v%d' % V_JL); a('v_lshl_add_u32 v18, v%d, 4, v18' % V_G)
    a('s_and_b32 s%d, s%d, 3' % (T0, S_J)); a('s_lshl_b32 s%d, s%d, 3' % (T0, T0)); a('s_add_u32 s%d, s%d, s%d' % (T0, T0, S_WAVE)); a('s_lshl_b32 s%d, s%d, 17' % (T0, T0))
    a('s_lshl_b32 s%d, s%d, 8' % (T1, S_H)); a('s_add_u32 s%d, s%d, s%d' % (T0, T0, T1))
    for s in range(4): a('buffer_load_dwordx4 %s, v18, %s, s%d offen offset:%d nt' % (V(WK + 4 * s), S(SRD_C), T0, s * 64))
    make_sel(a, 44, 45, 46, 47)
    early_compute(a, toks, RED, WS_QPA)
    a.stamp(1)
    a('v_lshlrev_b32 v16, 11, v%d' % V_G); a('v_lshl_add_u32 v16, v%d, 4, v16' % V_JL)
    a('s_lshl_b32 s%d, s%d, 13' % (T0, S_H)); a('s_lshl_b32 s%d, s%d, 8' % (T1, S_WAVE)); a('s_add_u32 s%d, s%d, s%d' % (T0, T0, T1)); a('s_add_u32 s%d, s%d, 0x%x' % (S_O, T0, WS_QPA))
    poll(a, lambda: a('buffer_load_dwordx4 v[20:23], v16, %s, s%d offen sc1' % (S(SRD_WS), S_O)), [22])
    a.stamp(2)
    mfma16(a, 24, V_ONE, 20, first=True)
    a('v_cvt_pk_bf16_f32 v28, v24, v25'); a('v_cvt_pk_bf16_f32 v29, v26, v27')
    a('v_lshlrev_b32 v16, 3, v%d' % V_JL); a('s_lshl_b32 s%d, s%d, 7' % (T0, S_WAVE)); a('s_add_u32 s%d, s%d, 0x%x' % (T0, T0, QB16)); a('v_add_u32 v16, s%d, v16' % T0)
    a('s_mov_b64 exec, 0xffff'); a('ds_write_b64 v16, v[28:29]'); a('s_mov_b64 exec, -1')
    a('s_waitcnt lgkmcnt(0)'); a('s_barrier')
    a('v_and_b32 v16, 3, v%d' % L); a('v_lshlrev_b32 v16, 8, v16'); a('v_lshl_add_u32 v16, v%d, 4, v16' % V_G); a('v_add_u32 v16, 0x%x, v16' % QB16)
    QF = 24
    for s in range(4): a('ds_read_b128 %s, v16 offset:%d' % (V(QF + 4 * s), s * 64))
    a('s_waitcnt lgkmcnt(0)')
    for s in range(4): mfma16(a, 40, WK + 4 * s, QF + 4 * s, first=(s == 0))
    a('v_cvt_pk_bf16_f32 v44, v40, v41'); a('v_cvt_pk_bf16_f32 v45, v42, v43'); a('v_mov_b32 v46, s%d' % S_TAG); a('v_mov_b32 v47, 0')
    a('v_lshlrev_b32 v16, 16, v%d' % V_JL); a('v_lshl_add_u32 v16, v%d, 4, v16' % V_G)
    a('s_lshl_b32 s%d, s%d, 11' % (T0, S_H)); a('s_and_b32 s%d, s%d, 3' % (T1, S_J)); a('s_lshl_b32 s%d, s%d, 9' % (T1, T1)); a('s_add_u32 s%d, s%d, s%d' % (T0, T0, T1))
    a('s_lshl_b32 s%d, s%d, 6' % (T1, S_WAVE)); a('s_add_u32 s%d, s%d, s%d' % (T0, T0, T1)); a('s_add_u32 s%d, s%d, 0x%x' % (T0, T0, WS_QABS))
    a('v_cmp_gt_u32 vcc, 4, v%d' % V_JL); a('s_and_saveexec_b64 s[%d:%d], vcc' % (S_EX, S_EX + 1))
    a('buffer_store_dwordx4 v[44:47], v16, %s, s%d offen sc1' % (S(SRD_WS), T0))
    a('s_mov_b64 exec, s[%d:%d]' % (S_EX, S_EX + 1))
    a.stamp(3)
    a('s_barrier')
    a('s_lshl_b32 s%d, s%d, 4' % (S_U, S_XCD)); a('s_add_u32 s%d, s%d, s%d' % (S_U, S_U, S_T)); a('s_sub_u32 s%d, s%d, 16' % (S_U, S_U))
    a('s_lshr_b32 s%d, s%d, 5' % (S_B, S_U)); a('s_bfe_u32 s%d, s%d, 0x30002' % (S_KVH, S_U)); a('s_and_b32 s%d, s%d, 3' % (S_SP, S_U))
    a('s_lshr_b32 s%d, s%d, 2' % (T0, S_U)); a('s_lshl_b32 s%d, s%d, 20' % (T0, T0)); a('s_lshl_b32 s%d, s%d, 16' % (T1, S_SP)); a('s_add_u32 s%d, s%d, s%d' % (T0, T0, T1))
    a('s_add_u32 s%d, s%d, %d' % (T0, T0, 3072 * 256))
    srd(a, SRD_A, P_K, 65536, T0); srd(a, SRD_B, P_V, 65536, T0)
    VK, VV = 16, 20
    for n4 in range(4):
        a('v_add_u32 v24, %d, v%d' % (4 * n4, V_G)); a('v_xor_b32 v24, v24, v%d' % V_JL); a('v_lshlrev_b32 v24, 4, v24'); a('v_lshl_add_u32 v%d, v%d, 8, v24' % (VK + n4, V_G))
    for n2 in range(2):
        a('v_add_u32 v24, %d, v%d' % (4 * n2, V_G)); a('v_lshlrev_b32 v24, 1, v24'); a('v_xor_b32 v24, v24, v%d' % V_JL); a('v_lshlrev_b32 v24, 4, v24'); a('v_lshl_add_u32 v%d, v%d, 8, v24' % (VV + n2, V_G))
    a('s_lshl_b32 s%d, s%d, 13' % (T0, S_WAVE))
    for n in range(8):
        a('s_add_u32 s%d, s%d, %d' % (T1, T0, n * 1024)); a('s_mov_b32 m0, s%d' % T1)
        a('buffer_load_dwordx4 v%d, %s, s%d offen nt lds' % (VK + n % 4, S(SRD_A), T1))
    for n in range(8):
        a('s_add_u32 s%d, s%d, %d' % (T1, T0, n * 1024)); a('s_add_u32 s%d, s%d, 65536' % (T2, T1)); a('s_mov_b32 m0, s%d' % T2)
        a('buffer_load_dwordx4 v%d, %s, s%d offen nt lds' % (VV + n % 2, S(SRD_B), T1))
    QB, MX, PX = SCR + 20480, SCR + 21504, SCR + 22528
    a('v_lshlrev_b32 v24, 11, v%d' % V_G); a('v_lshl_add_u32 v24, v%d, 4, v24' % V_JL)
    a('s_lshl_b32 s%d, s%d, 2' % (T0, S_KVH)); a('s_lshr_b32 s%d, s%d, 1' % (T1, S_WAVE)); a('s_add_u32 s%d, s%d, s%d' % (T0, T0, T1)); a('s_lshl_b32 s%d, s%d, 13' % (T0, T0))
    a('s_lshl_b32 s%d, s%d, 9' % (T1, S_B)); a('s_add_u32 s%d, s%d, s%d' % (T0, T0, T1)); a('s_and_b32 s%d, s%d, 1' % (T1, S_WAVE)); a('s_lshl_b32 s%d, s%d, 8' % (T1, T1)); a('s_add_u32 s%d, s%d, s%d' % (T0, T0, T1))
    a('s_add_u32 s%d, s%d, 0x%x' % (S_O, T0, WS_QPB))
    poll(a, lambda: a('buffer_load_dwordx4 v[28:31], v24, %s, s%d offen sc1' % (S(SRD_WS), S_O)), [30])
    a.stamp(4)
    late_issue(a)
    mfma16(a, 32, V_ONE, 28, first=True)
    a('v_cvt_pk_bf16_f32 v36, v32, v33'); a('v_cvt_pk_bf16_f32 v37, v34, v35')
    a('v_lshlrev_b32 v24, 3, v%d' % V_JL); a('s_lshl_b32 s%d, s%d, 7' % (T0, S_WAVE)); a('s_add_u32 s%d, s%d, 0x%x' % (T0, T0, QB)); a('v_add_u32 v24, s%d, v24' % T0)
    a('s_mov_b64 exec, 0xffff'); a('ds_write_b64 v24, v[36:37]'); a('s_mov_b64 exec, -1')
    a('s_waitcnt lgkmcnt(0)'); a('s_barrier')
    AK = 16
    a('v_xor_b32 v24, v%d, v%d' % (V_G, V_JL)); a('v_lshlrev_b32 v24, 4, v24'); a('v_lshl_add_u32 v24, v%d, 8, v24' % V_JL)
    a('s_lshl_b32 s%d, s%d, 13' % (T0, S_WAVE)); a('v_add_u32 v24, s%d, v24' % T0)
    for s in range(4): a('v_xor_b32 v%d, %d, v24' % (AK + s, 64 * s))
    a('v_and_b32 v25, 3, v%d' % L); a('v_lshlrev_b32 v25, 8, v25'); a('v_lshl_add_u32 v25, v%d, 4, v25' % V_G); a('v_add_u32 v25, 0x%x, v25' % QB)
    QF, KF, SD = 28, 44, 76
    for s in range(4): a('ds_read_b128 %s, v25 offset:%d' % (V(QF + 4 * s), s * 64))
    for T in range(2):
        for s in range(4): a('ds_read_b128 %s, v%d offset:%d' % (V(KF + 16 * T + 4 * s), AK + s, T * 4096))
    a('s_waitcnt lgkmcnt(0)')
    for T in range(2):
        for s in range(4): mfma16(a, SD + 4 * T, KF + 16 * T + 4 * s, QF + 4 * s, first=(s == 0))
    VM, VT = 84, 85
    a('v_max3_f32 v%d, v%d, v%d, v%d' % (VM, SD, SD + 1, SD + 2)); a('v_max3_f32 v%d, v%d, v%d, v%d' % (VM, VM, SD + 3, SD + 4)); a('v_max3_f32 v%d, v%d, v%d, v%d' % (VM, VM, SD + 5, SD + 6)); a('v_max_f32 v%d, v%d, v%d' % (VM, VM, SD + 7))
    xor16(a, 'v_max_f32', VM, VT); xor32(a, 'v_max_f32', VM, VT)
    a('v_and_b32 v86, 3, v%d' % L); a('v_lshlrev_b32 v86, 5, v86'); a('v_add_u32 v86, 0x%x, v86' % MX)
    a('s_lshl_b32 s%d, s%d, 2' % (T0, S_WAVE)); a('v_add_u32 v87, s%d, v86' % T0)
    a('ds_write_b32 v87, v%d' % VM)
    a('s_waitcnt lgkmcnt(0)'); a('s_barrier')
    a('ds_read_b128 v[88:91], v86'); a('ds_read_b128 v[92:95], v86 offset:16')
    a('s_waitcnt lgkmcnt(0)')
    a('v_max3_f32 v%d, v88, v89, v90' % VM); a('v_max3_f32 v%d, v%d, v91, v92' % (VM, VM)); a('v_max3_f32 v%d, v%d, v93, v94' % (VM, VM)); a('v_max_f32 v%d, v%d, v95' % (VM, VM))
    a('s_mov_b32 s%d, 0x%x' % (T1, f2u(CSCALE)))
    a('v_mul_f32 v%d, s%d, v%d' % (VM, T1, VM))
    for r in range(8): a('v_fma_f32 v%d, v%d, s%d, -v%d' % (SD + r, SD + r, T1, VM))
    for r in range(8): a('v_exp_f32 v%d, v%d' % (SD + r, SD + r))
    a('v_add_f32 v88, v%d, v%d' % (SD, SD + 1))
    for r in range(2, 8): a('v_add_f32 v88, v88, v%d' % (SD + r))
    xor16(a, 'v_add_f32', 88, VT); xor32(a, 'v_add_f32', 88, VT)
    a('ds_write_b32 v87, v88 offset:128')
    for q in range(4): a('v_cvt_pk_bf16_f32 v%d, v%d, v%d' % (88 + q, SD + 2 * q, SD + 2 * q + 1))
    a('v_lshlrev_b32 v92, 4, v%d' % L); a('v_add_u32 v92, 0x%x, v92' % PX)
    a('s_lshl_b32 s%d, s%d, 10' % (T0, S_WAVE)); a('v_add_u32 v93, s%d, v92' % T0)
    a('ds_write_b128 v93, v[88:91]')
    a('s_waitcnt lgkmcnt(0)'); a('s_barrier')
    PFR, VF, OD = 28, 96, 160
    for kk in range(8): a('ds_read_b128 %s, v92 offset:%d' % (V(PFR + 4 * kk), kk * 1024))
    a('ds_read_b128 v[88:91], v86 offset:128'); a('ds_read_b128 v[164:167], v86 offset:144')
    a('v_bfe_u32 v60, v%d, 2, 2' % L); a('v_and_b32 v61, 3, v%d' % L)
    a('v_lshl_add_u32 v62, v%d, 2, v60' % V_G)
    a('v_and_b32 v63, 7, v62'); a('v_lshlrev_b32 v63, 1, v63')
    a('v_lshrrev_b32 v64, 1, v61'); a('s_lshl_b32 s%d, s%d, 1' % (T0, S_WAVE)); a('v_add_u32 v64, s%d, v64' % T0)
    a('v_xor_b32 v64, v64, v63'); a('v_lshlrev_b32 v64, 4, v64'); a('v_lshl_add_u32 v64, v62, 8, v64')
    a('v_and_b32 v61, 1, v61'); a('v_lshl_add_u32 v64, v61, 3, v64'); a('v_add_u32 v64, 0x10000, v64')
    for kk in range(8):
        for z in range(2): a('ds_read_b64_tr_b16 %s, v64 offset:%d' % (V(VF + 4 * kk + 2 * z, 2), kk * 8192 + z * 4096))
    a('s_waitcnt lgkmcnt(0)')
    for kk in range(8): mfma16(a, OD, VF + 4 * kk, PFR + 4 * kk, first=(kk == 0))
    a('v_add_f32 v88, v88, v89'); a('v_add_f32 v90, v90, v91'); a('v_add_f32 v164, v164, v165'); a('v_add_f32 v166, v166, v167')
    a('v_add_f32 v88, v88, v90'); a('v_add_f32 v164, v164, v166'); a('v_add_f32 v89, v88, v164'); a('v_mov_b32 v88, v%d' % VM)
    a('v_mov_b32 v90, s%d' % S_TAG); a('v_mov_b32 v91, 0')
    a('v_cvt_pk_bf16_f32 v168, v%d, v%d' % (OD, OD + 1)); a('v_cvt_pk_bf16_f32 v169, v%d, v%d' % (OD + 2, OD + 3)); a('v_mov_b32 v170, s%d' % S_TAG); a('v_mov_b32 v171, 0')
    a('v_lshlrev_b32 v60, 14, v%d' % V_JL); a('v_lshl_add_u32 v61, v%d, 4, v60' % V_G)
    a('s_lshl_b32 s%d, s%d, 16' % (T0, S_KVH)); a('s_lshl_b32 s%d, s%d, 12' % (T1, S_B)); a('s_add_u32 s%d, s%d, s%d' % (T0, T0, T1)); a('s_lshl_b32 s%d, s%d, 10' % (T1, S_SP)); a('s_add_u32 s%d, s%d, s%d' % (T0, T0, T1))
    a('s_add_u32 s%d, s%d, 0x%x' % (T0, T0, WS_PBG)); a('s_lshl_b32 s%d, s%d, 6' % (T1, S_WAVE)); a('s_add_u32 s%d, s%d, s%d' % (T1, T1, T0))
    a('v_cmp_gt_u32 vcc, 4, v%d' % V_JL); a('s_and_saveexec_b64 s[%d:%d], vcc' % (S_EX, S_EX + 1))
    a('buffer_store_dwordx4 v[168:171], v61, %s, s%d offen sc1' % (S(SRD_WS), T1))
    sk = a.newlabel('nostatB')
    a('s_cmp_lg_u32 s%d, 0' % S_WAVE); a('s_cbranch_scc1 ' + sk)
    a('s_mov_b64 exec, 0xf')
    a('buffer_store_dwordx4 v[88:91], v60, %s, s%d offen offset:512 sc1' % (S(SRD_WS), T0))
    a.label(sk)
    a('s_mov_b64 exec, -1')
    a.stamp(5)
    a('s_branch ' + done)

def gemv64(a, xoff, wreg, D, first_wait=None):
    for p in range(2): a('ds_read_b32 v%d, v96 offset:%d' % (100 + p, xoff + p * 256))
    a('s_waitcnt lgkmcnt(0)')
    for i in range(2):
        for p in range(2): diagA(a, 120 + 4 * p, 100 + p, i)
        for p in range(2): mfma16(a, D + 4 * p, 120 + 4 * p, wreg + 4 * i, first=(i == 0))

def tail(a):
    L = V_LANE
    XC, XO, XD, RED1, RED2 = 0, 512, 1024, 2048, 2048 + 16384
    a('s_barrier')
    lb, ld = a.newlabel('combB'), a.newlabel('combdone')
    a('s_cmp_ge_u32 s%d, 4' % S_WAVE); a('s_cbranch_scc1 ' + lb)
    PD = 32
    a('v_lshlrev_b32 v16, 8, v%d' % V_G); a('v_lshl_add_u32 v16, v%d, 4, v16' % V_JL)
    a('s_lshl_b32 s%d, s%d, 3' % (T0, S_H)); a('s_add_u32 s%d, s%d, s%d' % (T0, T0, S_J)); a('s_lshl_b32 s%d, s%d, 2' % (T0, T0)); a('s_add_u32 s%d, s%d, s%d' % (T0, T0, S_WAVE))
    a('s_lshl_b32 s%d, s%d, 13' % (T0, T0)); a('s_add_u32 s%d, s%d, 0x%x' % (S_O, T0, WS_PAG)); a('s_add_u32 s%d, s%d, 4096' % (S_O + 1, S_O))
    a('v_cmp_gt_u32 vcc, 12, v%d' % V_JL); a('s_and_saveexec_b64 s[%d:%d], vcc' % (S_EX, S_EX + 1))
    def issue():
        for t in range(8): a('buffer_load_dwordx4 %s, v16, %s, s%d offen offset:%d sc1' % (V(PD + 4 * t), S(SRD_WS), S_O + t // 4, (t % 4) * 1024))
    a('s_mov_b64 s[78:79], exec')
    def issue1():
        a('s_mov_b64 exec, 1')
        a('buffer_load_dwordx4 %s, v16, %s, s%d offen offset:3072 sc1' % (V(PD), S(SRD_WS), S_O + 1))
    def issue_full():
        a('s_mov_b64 exec, s[78:79]'); issue()
    poll(a, issue_full, [PD + 4 * t + 3 for t in range(8)], pre=(issue1, PD + 3))
    a('s_mov_b64 exec, s[%d:%d]' % (S_EX, S_EX + 1))
    a.stamp(6)
    M, Lr = 64, 72
    for t in range(8):
        a('v_mov_b32_dpp v%d, v%d row_newbcast:11 row_mask:0xf bank_mask:0xf' % (M + t, PD + 4 * t))
        a('v_mov_b32_dpp v%d, v%d row_newbcast:11 row_mask:0xf bank_mask:0xf' % (Lr + t, PD + 4 * t + 1))
    a('v_max3_f32 v80, v%d, v%d, v%d' % (M, M + 1, M + 2)); a('v_max3_f32 v80, v80, v%d, v%d' % (M + 3, M + 4)); a('v_max3_f32 v80, v80, v%d, v%d' % (M + 5, M + 6)); a('v_max_f32 v80, v80, v%d' % (M + 7))
    xor16(a, 'v_max_f32', 80, 81); xor32(a, 'v_max_f32', 80, 81)
    for t in range(8): a('v_sub_f32 v%d, v%d, v80' % (M + t, M + t))
    for t in range(8): a('v_exp_f32 v%d, v%d' % (M + t, M + t))
    a('v_mul_f32 v82, v%d, v%d' % (M, Lr))
    for t in range(1, 8): a('v_fmac_f32 v82, v%d, v%d' % (M + t, Lr + t))
    xor16(a, 'v_add_f32', 82, 81); xor32(a, 'v_add_f32', 82, 81)
    a('v_rcp_f32 v82, v82')
    for t in range(8): a('v_mul_f32 v%d, v%d, v82' % (M + t, M + t))
    for q in range(4): a('v_cvt_pk_bf16_f32 v%d, v%d, v%d' % (84 + q, M + 2 * q, M + 2 * q + 1))
    for t in range(8):
        diagA(a, 88 + 4 * (t % 2), 84 + t // 2, t % 2)
        mfma16(a, 96, 88 + 4 * (t % 2), PD + 4 * t, first=(t == 0))
    a('v_cvt_pk_bf16_f32 v100, v96, v97'); a('v_cvt_pk_bf16_f32 v101, v98, v99')
    a('v_mul_u32_u24 v102, 12, v%d' % V_JL); a('v_lshl_add_u32 v102, v%d, 3, v102' % V_G); a('s_lshl_b32 s%d, s%d, 7' % (T0, S_WAVE)); a('v_add_u32 v102, s%d, v102' % T0)
    a('s_mov_b64 exec, 0x7ff'); a('ds_write2_b32 v102, v100, v101 offset0:%d offset1:%d' % (XC // 4, XC // 4 + 1))
    a('s_mov_b32 exec_lo, 0x03ff0000'); a('ds_write_b32 v102, v100 offset:%d' % XC)
    a('s_mov_b64 exec, -1')
    a('s_branch ' + ld)
    a.label(lb); a.fence()
    a('s_sub_u32 s%d, s%d, 4' % (T3, S_WAVE))
    a('s_lshl_b32 s%d, s%d, 2' % (T0, S_H)); a('s_add_u32 s%d, s%d, s%d' % (T0, T0, T3)); a('s_lshl_b32 s%d, s%d, 12' % (T0, T0)); a('s_add_u32 s%d, s%d, 0x%x' % (S_O, T0, WS_PBG))
    a('s_lshr_b32 s%d, s%d, 2' % (T1, S_J)); a('s_lshl_b32 s%d, s%d, 8' % (T1, T1)); a('s_add_u32 s%d, s%d, s%d' % (S_O + 1, S_O, T1))
    a('v_lshlrev_b32 v17, 10, v%d' % V_G); a('v_lshl_add_u32 v16, v%d, 4, v17' % V_JL)
    def issueB():
        a('buffer_load_dwordx4 v[32:35], v16, %s, s%d offen sc1' % (S(SRD_WS), S_O + 1))
        a('buffer_load_dwordx4 v[36:39], v17, %s, s%d offen offset:512 sc1' % (S(SRD_WS), S_O))
    poll(a, issueB, [34, 38])
    a.stamp(6)
    a('v_mov_b32 v80, v36')
    xor16(a, 'v_max_f32', 80, 81); xor32(a, 'v_max_f32', 80, 81)
    a('v_sub_f32 v36, v36, v80'); a('v_exp_f32 v36, v36'); a('v_mul_f32 v82, v36, v37')
    xor16(a, 'v_add_f32', 82, 81); xor32(a, 'v_add_f32', 82, 81)
    a('v_rcp_f32 v82, v82'); a('v_mul_f32 v36, v36, v82'); a('v_cvt_pk_bf16_f32 v84, v36, v36')
    diagA(a, 88, 84, 0)
    mfma16(a, 96, 88, 32, first=True)
    a('v_cvt_pk_bf16_f32 v100, v96, v97'); a('v_cvt_pk_bf16_f32 v101, v98, v99')
    a('v_lshlrev_b32 v102, 3, v%d' % V_JL); a('s_lshl_b32 s%d, s%d, 7' % (T0, T3)); a('v_add_u32 v102, s%d, v102' % T0)
    a('s_mov_b64 exec, 0xffff'); a('ds_write_b64 v102, v[100:101] offset:%d' % XO); a('s_mov_b64 exec, -1')
    a.label(ld); a.fence()
    a('s_waitcnt lgkmcnt(0)'); a('s_barrier')
    a('v_lshrrev_b32 v96, 3, v%d' % V_JL); a('v_lshlrev_b32 v96, 7, v96'); a('v_lshl_add_u32 v96, v%d, 5, v96' % V_G)
    a('s_lshl_b32 s%d, s%d, 2' % (T0, S_WAVE)); a('v_add_u32 v96, s%d, v96' % T0)
    a('s_waitcnt vmcnt(0)')
    gemv64(a, XC, W_UV, 104); gemv64(a, XO, W_BO, 112)
    red_addr(a, 97, 98)
    for p in range(2):
        a('ds_write_b128 v97, %s offset:%d' % (V(104 + 4 * p), RED1 + p * 1024)); a('ds_write_b128 v97, %s offset:%d' % (V(112 + 4 * p), RED2 + p * 1024))
    a('s_waitcnt lgkmcnt(0)'); a('s_barrier')
    s1, s2, s3 = a.newlabel('pubB'), a.newlabel('pubx'), a.newlabel('hop25')
    a('s_cmp_ge_u32 s%d, 2' % S_WAVE); a('s_cbranch_scc1 ' + s1)
    a('s_lshl_b32 s%d, s%d, 3' % (T0, S_H)); a('s_add_u32 s%d, s%d, s%d' % (T0, T0, S_J)); a('s_lshl_b32 s%d, s%d, 11' % (T0, T0)); a('s_add_u32 s%d, s%d, 0x%x' % (T0, T0, WS_CXP))
    red_publish(a, RED1, 0, T0)
    a('s_branch ' + s2)
    a.label(s1); a.fence()
    a('s_cmp_ge_u32 s%d, 4' % S_WAVE); a('s_cbranch_scc1 ' + s3)
    a('s_lshl_b32 s%d, s%d, 2' % (T0, S_RG)); a('s_add_u32 s%d, s%d, s%d' % (T0, T0, S_CG)); a('s_lshl_b32 s%d, s%d, 11' % (T0, T0)); a('s_add_u32 s%d, s%d, 0x%x' % (T0, T0, WS_OPG + 0x80000))
    red_publish(a, RED2, 2, T0)
    a('s_branch ' + s2)
    a.label(s3); a.fence()
    a.stamp(7)
    a('s_sub_u32 s%d, s%d, 4' % (T3, S_WAVE))
    a('v_lshlrev_b32 v16, 11, v%d' % V_G); a('v_lshl_add_u32 v16, v%d, 4, v16' % V_JL)
    a('s_lshl_b32 s%d, s%d, 14' % (T0, S_H)); a('s_lshl_b32 s%d, s%d, 9' % (T1, T3)); a('s_add_u32 s%d, s%d, s%d' % (T0, T0, T1)); a('s_lshr_b32 s%d, s%d, 2' % (T1, S_J)); a('s_lshl_b32 s%d, s%d, 8' % (T1, T1)); a('s_add_u32 s%d, s%d, s%d' % (T0, T0, T1))
    a('s_add_u32 s%d, s%d, 0x%x' % (S_O, T0, WS_CXP)); a('s_add_u32 s%d, s%d, 8192' % (S_O + 1, S_O))
    def issueC():
        a('buffer_load_dwordx4 v[32:35], v16, %s, s%d offen sc1' % (S(SRD_WS), S_O))
        a('buffer_load_dwordx4 v[36:39], v16, %s, s%d offen sc1' % (S(SRD_WS), S_O + 1))
    poll(a, issueC, [34, 38])
    mfma16(a, 40, V_ONE, 32, first=True); mfma16(a, 40, V_ONE, 36)
    a('v_cvt_pk_bf16_f32 v44, v40, v41'); a('v_cvt_pk_bf16_f32 v45, v42, v43')
    a('v_lshlrev_b32 v46, 3, v%d' % V_JL); a('s_lshl_b32 s%d, s%d, 7' % (T0, T3)); a('v_add_u32 v46, s%d, v46' % T0)
    a('s_mov_b64 exec, 0xffff'); a('ds_write_b64 v46, v[44:45] offset:%d' % XD); a('s_mov_b64 exec, -1')
    a.label(s2); a.fence()
    a('s_waitcnt lgkmcnt(0)'); a('s_barrier')
    a.stamp(8)
    gemv64(a, XD, W_O2, 104)
    for p in range(2): a('ds_write_b128 v97, %s offset:%d' % (V(104 + 4 * p), RED1 + p * 1024))
    a('s_waitcnt lgkmcnt(0)'); a('s_barrier')
    fin = a.newlabel('fin'); endl = a.newlabel('tail_end')
    a('s_cmp_ge_u32 s%d, 2' % S_WAVE); a('s_cbranch_scc1 ' + fin)
    a('s_lshl_b32 s%d, s%d, 2' % (T0, S_RG)); a('s_add_u32 s%d, s%d, s%d' % (T0, T0, S_CG)); a('s_lshl_b32 s%d, s%d, 11' % (T0, T0)); a('s_add_u32 s%d, s%d, 0x%x' % (T0, T0, WS_OPG))
    red_publish(a, RED1, 0, T0)
    a('s_branch ' + endl)
    a.label(fin); a.fence()
    a('s_cmp_lg_u32 s%d, 2' % S_WAVE); a('s_cbranch_scc1 ' + endl)
    a('s_and_b32 s%d, s%d, 3' % (T0, S_T)); a('s_cmp_lg_u32 s%d, 0' % T0); a('s_cbranch_scc1 ' + endl)
    a('s_lshl_b32 s%d, s%d, 3' % (T0, S_XCD)); a('s_add_u32 s%d, s%d, s%d' % (T0, T0, S_J))
    a('s_lshr_b32 s%d, s%d, 5' % (S_R0, T0)); a('s_bfe_u32 s%d, s%d, 0x20003' % (S_R1, T0)); a('s_bfe_u32 s%d, s%d, 0x20001' % (S_R2, T0)); a('s_and_b32 s%d, s%d, 1' % (S_R3, T0))
    a('v_lshlrev_b32 v16, 13, v%d' % V_G); a('v_lshl_add_u32 v16, v%d, 4, v16' % V_JL)
    a('s_lshl_b32 s%d, s%d, 19' % (T0, S_R0)); a('s_lshl_b32 s%d, s%d, 11' % (T1, S_R1)); a('s_add_u32 s%d, s%d, s%d' % (T0, T0, T1)); a('s_lshl_b32 s%d, s%d, 9' % (T1, S_R2)); a('s_add_u32 s%d, s%d, s%d' % (T0, T0, T1))
    a('s_lshl_b32 s%d, s%d, 8' % (T1, S_R3)); a('s_add_u32 s%d, s%d, s%d' % (T0, T0, T1)); a('s_add_u32 s%d, s%d, 0x%x' % (S_O, T0, WS_OPG))
    def issueF():
        for t in range(16):
            a('s_add_u32 s%d, s%d, %d' % (T1, S_O, t * 32768))
            a('buffer_load_dwordx4 %s, v16, %s, s%d offen sc1' % (V(32 + 4 * t), S(SRD_WS), T1))
    def issueF1():
        a('s_mov_b64 exec, 1')
        a('buffer_load_dwordx4 %s, v16, %s, s%d offen sc1' % (V(32), S(SRD_WS), S_O))
    def issueF2():
        a('s_mov_b64 exec, -1'); issueF()
    poll(a, issueF2, [32 + 4 * t + 2 for t in range(16)], pre=(issueF1, 34))
    a.stamp(9)
    for t in range(16): mfma16(a, 100, V_ONE, 32 + 4 * t, first=(t == 0))
    a('v_cvt_pk_bf16_f32 v104, v100, v101'); a('v_cvt_pk_bf16_f32 v105, v102, v103')
    srd(a, SRD_A, P_OUT, 8192)
    a('s_lshl_b32 s%d, s%d, 11' % (T0, S_R2)); a('s_lshl_b32 s%d, s%d, 10' % (T1, S_R0)); a('s_add_u32 s%d, s%d, s%d' % (T0, T0, T1)); a('s_lshl_b32 s%d, s%d, 8' % (T1, S_R1)); a('s_add_u32 s%d, s%d, s%d' % (T0, T0, T1))
    a('s_lshl_b32 s%d, s%d, 7' % (T1, S_R3)); a('s_add_u32 s%d, s%d, s%d' % (T0, T0, T1))
    a('v_lshlrev_b32 v16, 3, v%d' % V_JL)
    a('s_mov_b64 exec, 0xffff')
    a('buffer_store_dwordx2 v[104:105], v16, %s, s%d offen' % (S(SRD_A), T0))
    a('s_cmp_lg_u32 s2, 0'); a('s_cbranch_scc1 ' + endl)
    a('s_mov_b64 exec, 1'); a('v_mov_b32 v16, 0'); a('v_mov_b32 v17, s%d' % S_N)
    a('buffer_store_dword v17, v16, %s, 0 offen sc1' % S(SRD_WS))
    a.label(endl); a.fence()
    a('s_mov_b64 exec, -1')

def write_stamps(a):
    if not STAMPS: return
    a.stamp(9) if False else None
    a('s_waitcnt lgkmcnt(0)')
    a('s_memrealtime s[%d:%d]' % (S_STAMP + 20, S_STAMP + 21)) if False else None
    a('s_lshl_b32 s%d, s2, 3' % T0); a('s_add_u32 s%d, s%d, s%d' % (T0, T0, S_WAVE)); a('s_lshl_b32 s%d, s%d, 7' % (T0, T0)); a('s_add_u32 s%d, s%d, 0x%x' % (T0, T0, WS_STAMP))
    a('s_memrealtime s[76:77]'); a('s_waitcnt lgkmcnt(0)')
    a('v_mov_b32 v16, 0'); a('s_mov_b64 exec, 1')
    for k in range(10):
        a('v_mov_b32 v18, s%d' % (S_STAMP + 2 * k)); a('v_mov_b32 v19, s%d' % (S_STAMP + 2 * k + 1))
        a('buffer_store_dwordx2 v[18:19], v16, %s, s%d offen offset:%d' % (S(SRD_WS), T0, 8 * k))
    a('v_mov_b32 v18, s76'); a('v_mov_b32 v19, s77')
    a('buffer_store_dwordx2 v[18:19], v16, %s, s%d offen offset:80' % (S(SRD_WS), T0))

def build(stamps=False):
    global STAMPS
    STAMPS = stamps
    a = K()
    prologue(a)
    if stamps:
        for k in range(1, 10): a('s_mov_b64 s[%d:%d], 0' % (S_STAMP + 2 * k, S_STAMP + 2 * k + 1))
    lb, done = a.newlabel('roleB'), a.newlabel('attn_done')
    a('s_cmp_ge_u32 s%d, 16' % S_T); a('s_cbranch_scc1 ' + lb)
    role_A(a, done)
    a.label(lb); a.fence()
    role_B(a, done)
    a.label(done); a.fence()
    tail(a)
    write_stamps(a)
    a.label('L_end'); a('s_endpgm')
    hdr = open('concat_heads__compressed_kv_cla__sliding_block_cached__decode.s.ref').read().split('\n')
    hdr = [l for l in hdr if l.startswith(';') and '@launch' not in l and 'Override launch' not in l and 'grid=ceil' not in l][:16]
    txt = '\n'.join(hdr) + '\n; @launch grid=(256,1,1) block=(512,1,1) lds=163840\n.amdgcn_target "amdgcn-amd-amdhsa--gfx950"\n'
    txt += kernel_head(NAME) + a.render() + kernel_desc(NAME, 248, 0, sgpr=102)
    return txt

if __name__ == '__main__':
    out = sys.argv[1] if len(sys.argv) > 1 else 'v3.s'
    open(out, 'w').write(build(False))
    open(out.replace('.s', '_st.s'), 'w').write(build(True))
```
